```python
import torch

def _softmax(x, axis=-1):
    return torch.softmax(x, dim=axis)

def _gelu(x):
    return torch.nn.functional.gelu(x, approximate='tanh')

def _silu(x):
    return torch.nn.functional.silu(x)

def _sigmoid(x):
    return torch.sigmoid(x)

def _layernorm(x, axis=-1, eps=1e-05):
    m = x.mean(dim=axis, keepdim=True)
    v = x.var(dim=axis, keepdim=True, unbiased=False)
    return (x - m) / torch.sqrt(v + eps)

def _scatter_add(tgt, idx, src, axis=0):
    return tgt.clone().index_add_(axis, idx, src)

def _segment_sum(src, seg, n):
    out = torch.zeros((n,) + src.shape[1:], dtype=src.dtype)
    return out.index_add_(0, seg, src)

def _pad(x, pw):
    flat = tuple((v for pair in reversed(pw) for v in pair))
    return torch.nn.functional.pad(x, flat)
kernel_name = 'gated_mix__mha_block__mixer_gmlp__prompt'

def setup_inputs():

    _w = lambda a: (lambda t: t.to(torch.bfloat16) if t.is_floating_point() else t)(torch.as_tensor(a))

    def _A_setup():
        B, S, D, H = (1, 2048, 512, 32)
        return {'x': _w((lambda *s: torch.randn(*s, dtype=torch.bfloat16) * 0.05)(B, S, D)), 'wqkv': _w((lambda *s: torch.randn(*s, dtype=torch.bfloat16) * 1.6)(D, 3 * D)), 'wo': _w((lambda *s: torch.randn(*s, dtype=torch.bfloat16) * 0.1)(D, D))}
    _A_in = _A_setup()

    def _B_setup():
        B, S, D, F = (1, 2048, 512, 1792)
        Fh = F // 2
        return {'x': _w((lambda *s: torch.randn(*s, dtype=torch.bfloat16) * 0.05)(B, S, D)), 'w_in': _w((lambda *s: torch.randn(*s, dtype=torch.bfloat16) * 0.8)(D, 2 * Fh)), 'w_sp': _w(0.01 * (lambda *s: torch.randn(*s, dtype=torch.bfloat16) * 0.8)(S, S)), 'b_sp': _w(1.0 + 0.01 * (lambda *s: torch.randn(*s, dtype=torch.bfloat16) * 0.05)(S)), 'w_out': _w((lambda *s: torch.randn(*s, dtype=torch.bfloat16) * 0.05)(Fh, D))}
    _B_in = _B_setup()
    return {'A_x': _A_in['x'], 'A_wqkv': _A_in['wqkv'], 'A_wo': _A_in['wo'], 'B_x': _B_in['x'], 'B_w_in': _B_in['w_in'], 'B_w_sp': _B_in['w_sp'], 'B_b_sp': _B_in['b_sp'], 'B_w_out': _B_in['w_out'], 'gate_w': _w((lambda *s: torch.randn(*s, dtype=torch.bfloat16) * 0.05)(512) * 16.0)}

def reference(A_x, A_wqkv, A_wo, B_x, B_w_in, B_w_sp, B_b_sp, B_w_out, gate_w):

    def _A_ref(x, wqkv, wo):
        B, S, D = x.shape
        H = 32
        Dh = D // H
        qkv = (lambda x, *d: x.permute(*d))((x @ wqkv).reshape(B, S, 3, H, Dh), 2, 0, 3, 1, 4)
        q, k, v = (qkv[0], qkv[1], qkv[2])
        scores = torch.einsum('bhqd,bhkd->bhqk', q, k) * Dh ** (-0.5)
        p = _softmax(scores, axis=-1)
        o = torch.einsum('bhqk,bhkd->bhqd', p, v)
        return (lambda x, *d: x.permute(*d))(o, 0, 2, 1, 3).reshape(B, S, D) @ wo

    def _B_ref(x, w_in, w_sp, b_sp, w_out):
        B, S, D = x.shape
        F = w_in.shape[-1]
        Fh = F // 2
        z = _gelu(torch.einsum('bsd,df->bsf', x, w_in))
        z1 = z[..., :Fh].clone()
        z2 = _layernorm(z[..., Fh:], axis=-1)
        g = torch.einsum('ts,bsf->btf', w_sp, z2) + b_sp[None, :, None]
        return torch.einsum('bsf,fd->bsd', z1 * g, w_out)
    x = A_x
    g = _sigmoid((x * gate_w).sum(-1, keepdims=True))
    a = _A_ref(x, A_wqkv, A_wo)
    b = _B_ref(x, B_w_in, B_w_sp, B_b_sp, B_w_out)
    return g * a + (1 - g) * b
```

```python
import struct
import math
from dsl import *

S = 2048
D = 512
FH = 896
MB = 1 << 20
WS_QF = 0
WS_KF = 2 * MB
WS_VF = 4 * MB
WS_Z1F = 6 * MB
WS_Z2F = 10 * MB
WS_AF = 14 * MB
WS_G = 20 * MB
WS_ST = 20 * MB + 65536
WS_BYTES = 268435456

LOG2E = 1.4426950408889634
QSCALE = 0.25 * LOG2E


def f32(x):
    return "0x%08x" % struct.unpack("<I", struct.pack("<f", x))[0]


def MFMA(d, a, b, c):
    cc = c if isinstance(c, str) else v(c, 16)
    return I("v_mfma_f32_32x32x16_bf16", v(d, 16), v(a, 4), v(b, 4), cc)


def srd(p, dst, ptr, nbytes):
    p("s_mov_b32", s(dst), s(ptr))
    p("s_mov_b32", s(dst + 1), s(ptr + 1))
    p("s_mov_b32", s(dst + 2), hex(nbytes))
    p("s_mov_b32", s(dst + 3), "0x00020000")


KA_X, KA_WQKV, KA_WO, KA_BX, KA_WIN, KA_WSP, KA_BSP, KA_WOUT = 16, 18, 20, 22, 24, 26, 28, 30
KA_GW, KA_OUT, KA_DBG, KA_WS = 32, 34, 36, 38


def load_kernargs(p):
    p("s_load_dwordx16", s(16, 16), s(0, 2), "0x0")
    p("s_load_dwordx8", s(32, 8), s(0, 2), "0x40")


def dma(p_or_none, voff, srd_, soff, m0val, tok, m0_base=None, imm=0, mods=""):
    out = []
    if m0_base is None:
        out.append(I("s_mov_b32", "m0", hex(m0val)))
    else:
        out.append(I("s_add_u32", "m0", s(m0_base), hex(m0val)))
    m = "offen lds" if not imm else f"offen offset:{imm} lds"
    if mods:
        m = m.replace(" lds", " " + mods + " lds")
    out.append(I("buffer_load_dwordx4", v(voff), s(srd_, 4), soff if isinstance(soff, str) else s(soff), mods=m, tok_w=tok))
    return out


def kernel_text(name, body, vgprs=256, sgprs=102):
    return f""".text
.globl {name}
.p2align 8
.type {name},@function
{name}:
{body}
.section .rodata,"a"
.p2align 6
.amdhsa_kernel {name}
  .amdhsa_next_free_vgpr {vgprs}
  .amdhsa_next_free_sgpr {sgprs}
  .amdhsa_accum_offset {vgprs}
  .amdhsa_group_segment_fixed_size 0
  .amdhsa_kernarg_size 96
  .amdhsa_user_sgpr_count 2
  .amdhsa_user_sgpr_kernarg_segment_ptr 1
  .amdhsa_system_sgpr_workgroup_id_x 1
.end_amdhsa_kernel
"""
```

```python
import re

_REG_RE = re.compile(r"^(-?\|?)([vsa])(\d+)\|?$")
_RNG_RE = re.compile(r"^(-?\|?)([vsa])\[(\d+):(\d+)\]\|?$")


def v(i, n=1):
    return f"v{i}" if n == 1 else f"v[{i}:{i + n - 1}]"


def s(i, n=1):
    return f"s{i}" if n == 1 else f"s[{i}:{i + n - 1}]"


def regs_of(op):
    if not isinstance(op, str):
        return set()
    op = op.strip()
    if op.startswith("neg(") or op.startswith("abs("):
        op = op[4:-1]
    m = _REG_RE.match(op)
    if m:
        return {(m.group(2), int(m.group(3)))}
    m = _RNG_RE.match(op)
    if m:
        return {(m.group(2), i) for i in range(int(m.group(3)), int(m.group(4)) + 1)}
    if op == "vcc":
        return {("s", 106), ("s", 107)}
    if op == "vcc_lo":
        return {("s", 106)}
    if op == "vcc_hi":
        return {("s", 107)}
    if op == "exec":
        return {("x", 0)}
    if op in ("exec_lo", "exec_hi"):
        return {("x", 0)}
    if op == "m0":
        return {("m", 0)}
    return set()


TRANS = ("v_exp_f32", "v_rcp_f32", "v_rsq_f32", "v_log_f32", "v_sqrt_f32", "v_sin_f32", "v_cos_f32",
         "v_exp_f16", "v_rcp_f16", "v_rcp_iflag_f32")
VCC = {("s", 106), ("s", 107)}
EXEC = {("x", 0)}
M0 = {("m", 0)}


class Ins:
    __slots__ = ("op", "ops", "mods", "kind", "dst", "src", "passes", "srcc", "srcab", "tok_w", "tok_r",
                 "comment", "wait_vm", "wait_lgkm", "nops", "wide", "data", "target", "dpp", "sdwa")

    def __init__(self, op, *ops, mods="", tok_w=(), tok_r=(), comment=""):
        self.op = op
        self.ops = [str(o) for o in ops]
        self.mods = mods
        self.tok_w = tuple(tok_w) if not isinstance(tok_w, str) else (tok_w,)
        self.tok_r = tuple(tok_r) if not isinstance(tok_r, str) else (tok_r,)
        self.comment = comment
        self.wait_vm = None
        self.wait_lgkm = None
        self.nops = 0
        self.passes = 0
        self.srcc = set()
        self.srcab = set()
        self.wide = False
        self.data = set()
        self.target = None
        self.dpp = ("row_" in mods or "quad_perm" in mods or "wave_" in mods or "_dpp" in op)
        self.sdwa = ("_sdwa" in op or "op_sel" in mods)
        self.classify()

    def classify(self):
        op, ops = self.op, self.ops
        R = [regs_of(o) for o in ops]
        dst, src = set(), set()
        if op == "label":
            self.kind = "label"
        elif op == "need":
            self.kind = "need"
            for r in R:
                src |= r
        elif op == "raw":
            self.kind = "raw"
        elif op.startswith("v_mfma"):
            self.kind = "mfma"
            self.passes = 8 if "32x32x16" in op else 4 if "16x16x32" in op else None
            assert self.passes, op
            dst = R[0]
            self.srcab = R[1] | R[2]
            self.srcc = R[3]
            src = R[1] | R[2] | R[3]
        elif op.startswith("v_"):
            self.kind = "valu"
            base = op
            if base.startswith("v_cmpx"):
                dst = set(EXEC)
                dst |= R[0]
                for r in R[1:]:
                    src |= r
            elif base.startswith("v_cmp"):
                dst = R[0]
                for r in R[1:]:
                    src |= r
            elif "permlane" in base and "swap" in base:
                dst = R[0] | R[1]
                src = R[0] | R[1]
            elif base.startswith("v_swap"):
                dst = R[0] | R[1]
                src = R[0] | R[1]
            elif re.match(r"v_(add|sub|subrev)_co_u32", base):
                dst = R[0] | R[1]
                for r in R[2:]:
                    src |= r
            elif re.match(r"v_(addc|subb|subbrev)_co_u32", base):
                dst = R[0] | R[1]
                for r in R[2:]:
                    src |= r
            elif base.startswith("v_nop"):
                pass
            else:
                dst = R[0]
                for r in R[1:]:
                    src |= r
                if re.match(r"v_(fmac|mac|pk_fmac|dot2c|dot4c|writelane)", base) or self.dpp or "UNUSED_PRESERVE" in self.mods:
                    src |= R[0]
                if base.startswith("v_cndmask") and len(ops) == 3:
                    src |= VCC
        elif op.startswith("s_load") or op.startswith("s_buffer_load") or op == "s_memtime" or op == "s_memrealtime":
            self.kind = "smem"
            dst = R[0]
            for r in R[1:]:
                src |= r
        elif op == "s_waitcnt":
            self.kind = "wait"
        elif op == "s_nop":
            self.kind = "nop"
        elif op in ("s_barrier", "s_setprio", "s_sleep", "s_endpgm", "s_sethalt"):
            self.kind = "misc"
        elif op == "s_branch" or op.startswith("s_cbranch"):
            self.kind = "branch"
            self.target = ops[0]
            if "vcc" in op:
                src |= VCC
            if "exec" in op:
                src |= EXEC
        elif op.startswith("s_"):
            self.kind = "salu"
            if op.startswith("s_cmp") or op.startswith("s_bitcmp"):
                for r in R:
                    src |= r
            else:
                dst = R[0]
                for r in R[1:]:
                    src |= r
                if "saveexec" in op:
                    dst |= EXEC
                    src |= EXEC
                if op.startswith("s_addk") or op.startswith("s_mulk") or op.startswith("s_cmov"):
                    src |= R[0]
        elif op.startswith("buffer_load") or op.startswith("global_load"):
            lds = bool(re.search(r"\blds\b", self.mods)) or "_lds_" in op
            if lds:
                self.kind = "dma"
                for r in R:
                    src |= r
                src |= M0
            else:
                self.kind = "vload"
                dst = R[0]
                for r in R[1:]:
                    src |= r
        elif op.startswith("buffer_store") or op.startswith("global_store"):
            self.kind = "vstore"
            for r in R:
                src |= r
            self.data = R[0] if op.startswith("buffer") else R[1]
            self.wide = op.endswith("x4") or op.endswith("x3")
        elif op.startswith("buffer_atomic") or op.startswith("global_atomic"):
            self.kind = "vstore"
            for r in R:
                src |= r
            if re.search(r"\bsc0\b", self.mods):
                self.kind = "vload"
                dst = R[0]
        elif op.startswith("buffer_inv") or op.startswith("buffer_wbl2"):
            self.kind = "vstore"
        elif op.startswith("ds_read") or op.startswith("ds_bpermute") or op.startswith("ds_permute") or op.startswith("ds_swizzle"):
            self.kind = "dsr"
            dst = R[0]
            for r in R[1:]:
                src |= r
        elif op.startswith("ds_write") or op.startswith("ds_add") or op.startswith("ds_max") or op.startswith("ds_or"):
            self.kind = "dsw"
            for r in R:
                src |= r
        else:
            raise ValueError("unknown op " + op)
        self.dst, self.src = dst, src

    def states(self):
        if self.kind in ("label", "need", "raw"):
            return 0
        if self.kind == "nop":
            return int(self.ops[0]) + 1
        return 1

    def text(self):
        if self.kind == "label":
            return f"{self.ops[0]}:"
        if self.kind == "need":
            return None
        if self.kind == "raw":
            return self.ops[0]
        t = "    " + self.op
        if self.ops:
            t += " " + ", ".join(self.ops)
        if self.mods:
            t += " " + self.mods
        if self.comment:
            t += "   ; " + self.comment
        return t


def is_valu(i):
    return i.kind == "valu"


def is_trans(i):
    return i.kind == "valu" and i.op.split("_e")[0] in TRANS or i.op in TRANS


def vregs(rs):
    return {r for r in rs if r[0] in ("v", "a")}


def sregs(rs):
    return {r for r in rs if r[0] == "s"}


def hazard_need(p, c):
    need = 0
    pk, ck = p.kind, c.kind
    vmem = ck in ("vload", "vstore", "dma")
    mem = vmem or ck in ("dsr", "dsw")
    if pk == "valu":
        pv = vregs(p.dst)
        ps = sregs(p.dst)
        pexec = bool(p.dst & EXEC)
        if ps:
            if vmem and (ps & c.src):
                need = max(need, 5)
            if ck == "valu" and (ps & c.src):
                need = max(need, 2)
                if c.op.startswith("v_readlane") or c.op.startswith("v_writelane") or c.op.startswith("v_div_fmas"):
                    need = max(need, 4)
            if ck == "branch" and "vcc" in c.op and (ps & VCC):
                need = max(need, 1)
            if ck == "salu" and (ps & c.src):
                need = max(need, 1)
        if pexec:
            if ck == "valu" and c.dpp:
                need = max(need, 5)
            if ck == "valu" and (c.op.startswith("v_readlane") or c.op.startswith("v_readfirstlane") or
                                 c.op.startswith("v_writelane") or "permlane" in c.op):
                need = max(need, 4)
            if ck == "valu" and any(o.startswith("exec") for o in c.ops):
                need = max(need, 2)
            if ck == "mfma":
                need = max(need, 4)
            if ck == "branch" and "exec" in c.op:
                need = max(need, 1)
        if pv:
            if ck == "valu":
                if c.dpp and (pv & c.src):
                    need = max(need, 2)
                if (c.op.startswith("v_readlane") or c.op.startswith("v_readfirstlane")) and (pv & c.src):
                    need = max(need, 1)
                if "permlane" in c.op and (pv & c.src):
                    need = max(need, 2)
                if p.sdwa and (pv & (c.src | c.dst)):
                    need = max(need, 1)
                if is_trans(p) and not is_trans(c) and (pv & c.src):
                    need = max(need, 1)
            if ck == "mfma" and (pv & c.src):
                need = max(need, 2)
            if is_trans(p) and mem and (pv & c.src):
                need = max(need, 1)
    elif pk == "salu":
        if (p.dst & M0) and (ck == "dma" or "addtid" in c.op):
            need = max(need, 1)
    elif pk == "vstore":
        if p.wide and (p.data & c.dst):
            need = max(need, 2 if ck in ("valu", "mfma") else 1)
    elif pk == "mfma":
        P = p.passes
        d = p.dst
        if ck == "mfma":
            if d & c.srcc:
                if d == c.srcc and c.passes == P:
                    pass
                else:
                    need = max(need, {4: 6, 8: 10}[P])
            if d & c.srcab:
                need = max(need, {4: 8, 8: 12}[P])
            if (d & c.dst) and not (d == c.dst and c.passes == P):
                need = max(need, {4: 8, 8: 12}[P])
        elif ck == "valu":
            if d & (c.src | c.dst):
                need = max(need, {4: 8, 8: 12}[P])
            if p.srcc & c.dst:
                need = max(need, {4: 3, 8: 7}[P])
        elif mem:
            if d & (c.src | c.dst):
                need = max(need, {4: 8, 8: 12}[P])
            if p.srcc & c.dst:
                need = max(need, {4: 3, 8: 7}[P])
    return need


MAXD = 14


class Prog:
    def __init__(self):
        self.ins = []
        self._lab = 0

    def add(self, x):
        if isinstance(x, (list, tuple)):
            for y in x:
                self.add(y)
        elif x is not None:
            self.ins.append(x)
        return x

    def __call__(self, op, *ops, **kw):
        return self.add(Ins(op, *ops, **kw))

    def label(self, name):
        return self.add(Ins("label", name))

    def newlabel(self, base="L"):
        self._lab += 1
        return f"{base}_{self._lab}"

    def _cfg(self):
        ins = self.ins
        labels = {i.ops[0]: k for k, i in enumerate(ins) if i.kind == "label"}
        preds = [[] for _ in ins]
        for k, i in enumerate(ins):
            fall = not (i.op in ("s_branch", "s_endpgm"))
            if fall and k + 1 < len(ins):
                preds[k + 1].append(k)
            if i.kind == "branch":
                preds[labels[i.target]].append(k)
        return labels, preds

    def insert_waits(self):
        ins = self.ins
        labels, preds = self._cfg()
        for i in ins:
            i.wait_vm = None
            i.wait_lgkm = None

        def merge(a, b):
            if a is None:
                return b
            if b is None:
                return a
            out = ({}, {}, a[2] or b[2])
            for c in (0, 1):
                for k, x in a[c].items():
                    out[c][k] = x
                for k, x in b[c].items():
                    out[c][k] = min(x, out[c][k]) if k in out[c] else x
            return out

        def apply_wait(st, vm, lg):
            vmm, lgm, sm = st
            if vm is not None:
                vmm = {k: x for k, x in vmm.items() if x < vm}
            if lg is not None:
                if sm:
                    if lg == 0:
                        lgm = {}
                        sm = False
                else:
                    lgm = {k: x for k, x in lgm.items() if x < lg}
            return (vmm, lgm, sm)

        changed_outer = True
        it = 0
        while changed_outer:
            it += 1
            assert it < 50
            changed_outer = False
            saved = {}
            changed = True
            while changed:
                changed = False
                cur = ({}, {}, False)
                for k, i in enumerate(ins):
                    if i.kind == "label":
                        cur = merge(cur, saved.get(i.ops[0]))
                    if cur is None:
                        continue
                    keys = set(i.src) | set(i.dst) | set(i.tok_r)
                    nv = None
                    nl = None
                    for key in keys:
                        if key in cur[0]:
                            x = min(cur[0][key], 63)
                            nv = x if nv is None else min(nv, x)
                        if key in cur[1]:
                            x = 0 if cur[2] else min(cur[1][key], 15)
                            nl = x if nl is None else min(nl, x)
                    if nv is not None and (i.wait_vm is None or nv < i.wait_vm):
                        i.wait_vm = nv
                        changed_outer = True
                    if nl is not None and (i.wait_lgkm is None or nl < i.wait_lgkm):
                        i.wait_lgkm = nl
                        changed_outer = True
                    cur = apply_wait(cur, i.wait_vm, i.wait_lgkm)
                    if i.kind == "wait":
                        t = " ".join(i.ops) + " " + i.mods
                        m = re.search(r"vmcnt\((\d+)\)", t)
                        m2 = re.search(r"lgkmcnt\((\d+)\)", t)
                        cur = apply_wait(cur, int(m.group(1)) if m else None, int(m2.group(1)) if m2 else None)
                    elif i.kind in ("vload", "vstore", "dma"):
                        vmm = {kk: x + 1 for kk, x in cur[0].items()}
                        for key in set(i.dst) | set(i.tok_w):
                            vmm[key] = 0
                        cur = (vmm, cur[1], cur[2])
                    elif i.kind in ("dsr", "dsw"):
                        lgm = {kk: x + 1 for kk, x in cur[1].items()}
                        for key in set(i.dst) | set(i.tok_w):
                            lgm[key] = 0
                        cur = (cur[0], lgm, cur[2])
                    elif i.kind == "smem":
                        lgm = dict(cur[1])
                        for key in set(i.dst) | set(i.tok_w):
                            lgm[key] = 0
                        cur = (cur[0], lgm, True)
                    if i.kind == "branch":
                        old = saved.get(i.target)
                        new = merge(old, cur)
                        if old is None or new != old:
                            saved[i.target] = new
                            changed = True
                    if i.op in ("s_branch", "s_endpgm"):
                        cur = None
        out = []
        for i in ins:
            if i.wait_vm is not None or i.wait_lgkm is not None:
                t = []
                if i.wait_vm is not None:
                    t.append(f"vmcnt({i.wait_vm})")
                if i.wait_lgkm is not None:
                    t.append(f"lgkmcnt({i.wait_lgkm})")
                out.append(Ins("s_waitcnt", " ".join(t)))
                i.wait_vm = None
                i.wait_lgkm = None
            out.append(i)
        self.ins = out

    def insert_nops(self):
        while True:
            ins = self.ins
            labels, preds = self._cfg()
            extra = {}
            for k, c in enumerate(ins):
                if c.kind in ("label", "need", "raw", "nop", "wait", "misc"):
                    continue
                need = 0
                stack = [(p, 0) for p in preds[k]]
                seen = {}
                while stack:
                    p, d = stack.pop()
                    if p in seen and seen[p] <= d:
                        continue
                    seen[p] = d
                    pi = ins[p]
                    if pi.kind in ("valu", "salu", "vstore", "mfma"):
                        n = hazard_need(pi, c)
                        if n - d > need:
                            need = n - d
                    d2 = d + pi.states() + extra.get(p, 0)
                    if d2 < MAXD:
                        for q in preds[p]:
                            stack.append((q, d2))
                if need > 0:
                    extra[k] = need
            if not extra:
                break
            out = []
            for k, c in enumerate(ins):
                if k in extra:
                    n = extra[k]
                    while n > 0:
                        t = min(n, 16)
                        out.append(Ins("s_nop", t - 1))
                        n -= t
                out.append(c)
            self.ins = out

    def finish(self):
        self.insert_waits()
        self.insert_nops()
        return "\n".join(t for t in (i.text() for i in self.ins) if t is not None) + "\n"


def I(op, *ops, **kw):
    return Ins(op, *ops, **kw)


def need(*toks_or_regs):
    regs = [t for t in toks_or_regs if regs_of(t)]
    toks = [t for t in toks_or_regs if not regs_of(t)]
    return Ins("need", *regs, tok_r=toks)


def weave(main, side, start=0, end=None):
    main = list(main)
    side = list(side)
    if end is None:
        end = len(main)
    n = end - start
    if not side:
        return main
    out = main[:start]
    k = 0
    for j in range(n):
        out.append(main[start + j])
        want = (j + 1) * len(side) // n
        while k < want:
            out.append(side[k])
            k += 1
    out += side[k:]
    out += main[end:]
    return out


class Alloc:
    def __init__(self, lo, hi):
        self.cur = lo
        self.hi = hi
        self.names = {}

    def __call__(self, n=1, align=1, name=None):
        if n > 1 and align == 1:
            align = 2
        self.cur = (self.cur + align - 1) // align * align
        r = self.cur
        self.cur += n
        assert self.cur <= self.hi, f"out of registers ({name})"
        if name:
            self.names[name] = (r, n)
        return r
```

```python
from common import *

GC1 = -2.0 * math.sqrt(2.0 / math.pi) * LOG2E
GC2 = GC1 * 0.044715

K1_LDS = 163840
K1_WGS = 224


class LdsAddr:
    def __init__(self, reg, bias=0):
        self.reg = reg
        self.bias = bias

    def at(self, off, span=0):
        pre = []
        if not (0 <= off - self.bias and off + span - self.bias <= 65535):
            nb = off // 32768 * 32768
            d = nb - self.bias
            if d > 0:
                pre.append(I("v_add_u32", v(self.reg), hex(d), v(self.reg)))
            else:
                pre.append(I("v_subrev_u32", v(self.reg), hex(-d), v(self.reg)))
            self.bias = nb
        return pre, off - self.bias

    def clone(self):
        return LdsAddr(self.reg, self.bias)


def gelu_stream(regs, temps, vC2):
    out = []
    n = len(temps)
    for b in range(0, len(regs), n):
        grp = regs[b:b + n]
        T = temps[:len(grp)]
        for x, t in zip(grp, T):
            out.append(I("v_mul_f32", v(t), v(x), v(x)))
        for x, t in zip(grp, T):
            out.append(I("v_fmaak_f32", v(t), v(vC2), v(t), f32(GC1)))
        for x, t in zip(grp, T):
            out.append(I("v_mul_f32", v(t), v(t), v(x)))
        for x, t in zip(grp, T):
            out.append(I("v_exp_f32", v(t), v(t)))
        for x, t in zip(grp, T):
            out.append(I("v_add_f32", v(t), "1.0", v(t)))
        for x, t in zip(grp, T):
            out.append(I("v_rcp_f32", v(t), v(t)))
        for x, t in zip(grp, T):
            out.append(I("v_mul_f32", v(x), v(x), v(t)))
    return out


def cvt_stream(dst, src, n=8):
    return [I("v_cvt_pk_bf16_f32", v(dst + i), v(src + 2 * i), v(src + 2 * i + 1)) for i in range(n)]


def k1(name):
    p = Prog()
    SX, SWIN, SWQ, SWS, SDBG, SGW = 40, 44, 48, 52, 56, 60
    sW, sRT, sCT, sRB, sSLOT, sT0, sT1, sT2 = 64, 65, 66, 67, 68, 69, 70, 71
    sXoff = 72
    sZc = 73
    sQc = 74
    sSo = 75
    sTT = 76
    sO0, sO1, sO2, sO3 = 77, 78, 79, 80
    sScale = 81
    sQKb = 82
    sCnt = 83
    sFT = 84
    sPoll = 88
    va = Alloc(1, 64)
    vL = va()
    vXs0, vXs1, vWin, vWq = va(), va(), va(), va()
    vXr = [va() for _ in range(4)]
    vWr = va()
    vL16 = va()
    vC2 = va()
    vT = [va() for _ in range(8)]
    vS1, vS2, vR, vNMR, vA, vB = va(), va(), va(), va(), va(), va()
    WF = va(24, 4)
    PK = va(8, 4)
    ACC = [64, 80, 96, 112]
    XF = 128

    p("s_cmp_ge_u32", s(2), K1_WGS)
    p("s_cbranch_scc1", "K1_END")
    load_kernargs(p)
    p("v_and_b32", v(vL), 63, v(0))
    p("v_lshrrev_b32", v(vA), 6, v(0))
    p("v_readfirstlane_b32", s(sW), v(vA))
    p("s_and_b32", s(sT0), s(2), 7)
    p("s_lshr_b32", s(sT1), s(2), 3)
    p("s_lshr_b32", s(sRB), s(sT0), 1)
    p("s_lshl_b32", s(sRB), s(sRB), 2)
    p("s_and_b32", s(sT2), s(sT1), 3)
    p("s_add_u32", s(sRB), s(sRB), s(sT2))
    p("s_and_b32", s(sSLOT), s(sT0), 1)
    p("s_mul_i32", s(sSLOT), s(sSLOT), 7)
    p("s_lshr_b32", s(sT2), s(sT1), 2)
    p("s_add_u32", s(sSLOT), s(sSLOT), s(sT2))
    p("s_and_b32", s(sRT), s(sW), 3)
    p("s_lshr_b32", s(sCT), s(sW), 2)
    p("s_lshl_b32", s(sTT), s(sRB), 2)
    p("s_add_u32", s(sTT), s(sTT), s(sRT))
    p("s_lshl_b32", s(sXoff), s(sRB), 17)
    p("s_lshl_b32", s(sQc), s(sSLOT), 8)
    p("s_add_u32", s(sT0), s(sQc), 1792)
    p("s_sub_u32", s(sT1), s(sQc), 1792)
    p("s_cmp_lt_u32", s(sSLOT), 7)
    p("s_cselect_b32", s(sZc), s(sT0), s(sT1))
    p("s_lshl_b32", s(sT0), s(sSLOT), 2)
    p("s_sub_u32", s(sT1), s(sT0), 28)
    p("s_cmp_lt_u32", s(sSLOT), 7)
    p("s_cselect_b32", s(sFT), s(sT0), s(sT1))
    p("s_add_u32", s(sFT), s(sFT), s(sCT))
    p("s_cmp_lt_u32", s(sSLOT), 12)
    p("s_cselect_b32", s(sQc), s(sQc), 0)
    p("v_lshrrev_b32", v(vA), 3, v(vL))
    p("v_lshrrev_b32", v(vB), 4, v(vL))
    p("v_and_b32", v(vT[0]), 7, v(vL))
    p("v_xor_b32", v(vT[1]), v(vT[0]), v(vB))
    p("v_lshlrev_b32", v(vT[1]), 4, v(vT[1]))
    p("s_lshl_b32", s(sT0), s(sW), 4)
    p("v_add_u32", v(vT[2]), s(sT0), v(vA))
    p("v_lshlrev_b32", v(vT[2]), 10, v(vT[2]))
    p("v_add_u32", v(vXs0), v(vT[2]), v(vT[1]))
    p("v_xor_b32", v(vXs1), 64, v(vXs0))
    p("v_add_u32", v(vXs1), 8192, v(vXs1))
    p("v_and_b32", v(vT[1]), 1, v(vB))
    p("v_lshlrev_b32", v(vT[1]), 2, v(vT[1]))
    p("v_xor_b32", v(vT[1]), v(vT[0]), v(vT[1]))
    p("v_lshlrev_b32", v(vT[1]), 4, v(vT[1]))
    p("s_lshl_b32", s(sT0), s(sW), 3)
    p("v_add_u32", v(vT[2]), s(sT0), v(vA))
    p("v_mul_u32_u24", v(vWin), 3584, v(vT[2]))
    p("v_add_u32", v(vWin), v(vWin), v(vT[1]))
    p("v_mul_u32_u24", v(vWq), 3072, v(vT[2]))
    p("v_add_u32", v(vWq), v(vWq), v(vT[1]))
    p("s_lshl_b32", s(sT2), s(sW), 10)
    sW1k = 85
    sW2k = 86
    p("s_mov_b32", s(sW1k), s(sT2))
    p("s_lshl_b32", s(sW2k), s(sW), 11)
    srd(p, SX, KA_X, S * D * 2)
    srd(p, SWIN, KA_WIN, D * 1792 * 2)
    srd(p, SWQ, KA_WQKV, D * 1536 * 2)
    srd(p, SWS, KA_WS, WS_BYTES)
    srd(p, SDBG, KA_DBG, 256)
    srd(p, SGW, KA_GW, 1024)

    SLOT = 32768

    def dma_step(st):
        out = []
        base = (st % 5) * SLOT
        tok = f"st{st}"
        if st < 8:
            out.append(I("s_add_u32", s(sSo), s(sXoff), st * 128))
            out += dma(None, vXs0, SX, sSo, base, tok, m0_base=sW2k)
            out += dma(None, vXs1, SX, sSo, base + 1024, tok, m0_base=sW2k)
            for pr in range(2):
                out.append(I("s_add_u32", s(sSo), s(sZc), st * 64 * 3584 + pr * 128))
                out += dma(None, vWin, SWIN, sSo, base + 16384 + pr * 8192, tok, m0_base=sW1k)
        else:
            pr = (st - 8) // 2
            kb = ((st - 8) % 2) * 256
            for i in range(4):
                out.append(I("s_add_u32", s(sSo), s(sQc), (kb + 64 * i) * 3072 + pr * 128))
                out += dma(None, vWq, SWQ, sSo, base + i * 8192, tok, m0_base=sW1k)
        return out

    for st in range(5):
        p.add(dma_step(st))

    p("v_and_b32", v(vA), 31, v(vL))
    p("v_lshrrev_b32", v(vB), 5, v(vL))
    p("v_bfe_u32", v(vT[0]), v(vA), 1, 3)
    p("v_xor_b32", v(vT[0]), v(vT[0]), v(vB))
    p("v_lshlrev_b32", v(vT[0]), 4, v(vT[0]))
    p("v_lshlrev_b32", v(vT[1]), 7, v(vA))
    p("s_lshl_b32", s(sT0), s(sRT), 12)
    p("v_add3_u32", v(vXr[0]), v(vT[0]), v(vT[1]), s(sT0))
    for ks in range(1, 4):
        p("v_xor_b32", v(vXr[ks]), 32 * ks, v(vXr[0]))
    p("v_bfe_u32", v(vT[0]), v(vL), 2, 2)
    p("v_lshl_add_u32", v(vT[1]), v(vB), 3, v(vT[0]))
    p("v_lshlrev_b32", v(vT[1]), 7, v(vT[1]))
    p("v_lshrrev_b32", v(vT[0]), 1, v(vT[0]))
    p("v_xor_b32", v(vT[0]), s(sCT), v(vT[0]))
    p("v_lshl_add_u32", v(vT[1]), v(vT[0]), 6, v(vT[1]))
    p("v_bfe_u32", v(vT[0]), v(vL), 4, 1)
    p("v_lshl_add_u32", v(vT[1]), v(vT[0]), 5, v(vT[1]))
    p("v_and_b32", v(vT[0]), 3, v(vL))
    p("v_lshl_add_u32", v(vWr), v(vT[0]), 3, v(vT[1]))
    p("v_lshlrev_b32", v(vL16), 4, v(vL))
    p("v_mov_b32", v(vC2), f32(GC2))

    aX = [LdsAddr(r) for r in vXr]
    aW = LdsAddr(vWr)

    def wread(dst, off, aWx):
        out = []
        pre, imm = aWx.at(off, 512)
        out += pre
        out.append(I("ds_read_b64_tr_b16", v(dst, 2), v(aWx.reg), mods=f"offset:{imm}"))
        out.append(I("ds_read_b64_tr_b16", v(dst + 2, 2), v(aWx.reg), mods=f"offset:{imm + 512}"))
        return out

    def sync(st, nxt, has_g1):
        out = [need(f"st{st}"), I("s_waitcnt", "lgkmcnt(0)"), I("s_barrier")]
        if nxt is not None and (nxt < 8 or (has_g1 and nxt < 12)):
            out += dma_step(nxt)
        return out

    def reads0(kap):
        st, ks = divmod(kap, 4)
        base = (st % 5) * SLOT
        out = []
        pre, imm = aX[ks].at(base)
        out += pre
        out.append(I("ds_read_b128", v(XF + 4 * kap, 4), v(vXr[ks]), mods=f"offset:{imm}"))
        for pr in range(2):
            out += wread(WF + (pr * 3 + kap % 3) * 4, base + 16384 + pr * 8192 + ks * 2048, aW)
        return out

    def mf0(kap):
        return [MFMA(ACC[pr], WF + (pr * 3 + kap % 3) * 4, XF + 4 * kap, "0" if kap == 0 else ACC[pr]) for pr in range(2)]

    RA = 2
    for kap in range(-RA, 32):
        kr = kap + RA
        if kr < 32:
            if kr % 4 == 0:
                st = kr // 4
                p.add([need(f"st{st}"), I("s_waitcnt", "lgkmcnt(0)"), I("s_barrier")])
                nxt = st + 4
                if st >= 1:
                    p.add(dma_step(nxt))
            p.add(reads0(kr))
        if kap >= 0:
            p.add(mf0(kap))

    p("s_cmp_lt_u32", s(sSLOT), 7)
    p("s_cbranch_scc1", "K1_CLS_A")
    p("s_cmp_eq_u32", s(sSLOT), 7)
    p("s_cbranch_scc1", "K1_CLS_C")
    p("s_cmp_lt_u32", s(sSLOT), 12)
    p("s_cbranch_scc1", "K1_CLS_D")
    p("s_branch", "K1_CLS_E")

    def z1_epi():
        out = []
        out.append(I("s_mul_i32", s(sO0), s(sTT), 28))
        out.append(I("s_add_u32", s(sO0), s(sO0), s(sFT)))
        out.append(I("s_lshl_b32", s(sO0), s(sO0), 11))
        out.append(I("s_add_u32", s(sO0), s(sO0), hex(WS_Z1F)))
        out.append(I("s_add_u32", s(sO1), s(sO0), 4096))
        for pr in range(2):
            out += gelu_stream([ACC[pr] + i for i in range(16)], vT, vC2)
            out += cvt_stream(PK, ACC[pr])
            for m in range(2):
                out.append(I("buffer_store_dwordx4", v(PK + 4 * m, 4), v(vL16), s(SWS, 4), s([sO0, sO1][pr]),
                             mods=f"offen offset:{1024 * m}"))
        return out

    def z2_part1():
        out = []
        for pr in range(2):
            out += gelu_stream([ACC[pr] + i for i in range(16)], vT, vC2)
        regs = [ACC[pr] + i for pr in range(2) for i in range(16)]
        out.append(I("v_add_f32", v(vS1), v(regs[0]), v(regs[1])))
        out.append(I("v_mul_f32", v(vS2), v(regs[0]), v(regs[0])))
        out.append(I("v_add_f32", v(vA), v(regs[2]), v(regs[3])))
        out.append(I("v_mul_f32", v(vB), v(regs[1]), v(regs[1])))
        for i in range(4, 32, 2):
            out.append(I("v_add_f32", v(vS1), v(vS1), v(regs[i])))
            out.append(I("v_add_f32", v(vA), v(vA), v(regs[i + 1])))
        for i in range(2, 32, 2):
            out.append(I("v_fmac_f32", v(vS2), v(regs[i]), v(regs[i])))
            out.append(I("v_fmac_f32", v(vB), v(regs[i + 1]), v(regs[i + 1])))
        out.append(I("v_add_f32", v(vS1), v(vS1), v(vA)))
        out.append(I("v_add_f32", v(vS2), v(vS2), v(vB)))
        out.append(I("v_permlane32_swap_b32", v(vS1), v(vS2)))
        out.append(I("v_add_f32", v(vS1), v(vS1), v(vS2)))
        out.append(I("s_mul_i32", s(sO2), s(sTT), 14))
        out.append(I("s_lshl_b32", s(sO3), s(sSLOT), 1))
        out.append(I("s_add_u32", s(sO3), s(sO3), s(sCT)))
        out.append(I("s_add_u32", s(sO3), s(sO3), s(sO2)))
        out.append(I("s_lshl_b32", s(sO3), s(sO3), 8))
        out.append(I("s_add_u32", s(sO3), s(sO3), hex(WS_ST)))
        out.append(I("v_lshlrev_b32", v(vA), 2, v(vL)))
        out.append(I("buffer_store_dword", v(vS1), v(vA), s(SWS, 4), s(sO3), mods="offen sc1", tok_w="stat"))
        return out

    def flag_store():
        out = []
        lab = p.newlabel("K1_NF")
        out.append(I("s_cmp_lg_u32", s(sW), 0))
        out.append(I("s_cbranch_scc1", lab))
        out.append(I("s_lshl_b32", s(sT0), s(sRB), 4))
        out.append(I("s_lshl_b32", s(sT1), s(sSLOT), 1))
        out.append(I("s_add_u32", s(sT0), s(sT0), s(sT1)))
        out.append(I("v_mov_b32", v(vA), 0))
        out.append(I("v_mov_b32", v(vB), 1))
        out.append(I("s_mov_b64", "exec", 1))
        out.append(I("buffer_store_short", v(vB), v(vA), s(SDBG, 4), s(sT0), mods="offen sc1"))
        out.append(I("s_mov_b64", "exec", -1))
        out.append(Ins("label", lab))
        return out

    def z2_part2():
        out = []
        lp = p.newlabel("K1_POLL")
        ld = p.newlabel("K1_POLLD")
        out.append(I("s_lshl_b32", s(sT0), s(sRB), 4))
        out.append(I("v_mov_b32", v(vA), 0))
        out.append(I("s_mov_b32", s(sCnt), 0))
        out.append(Ins("label", lp))
        out.append(I("buffer_load_dwordx4", v(PK, 4), v(vA), s(SDBG, 4), s(sT0), mods="offen sc1"))
        out.append(I("v_and_b32", v(vB), v(PK), v(PK + 1)))
        out.append(I("v_or_b32", v(PK + 3), "0x10000", v(PK + 3)))
        out.append(I("v_and_b32", v(vB), v(vB), v(PK + 2)))
        out.append(I("v_and_b32", v(vB), v(vB), v(PK + 3)))
        out.append(I("v_readfirstlane_b32", s(sT1), v(vB)))
        out.append(I("s_cmp_eq_u32", s(sT1), "0x10001"))
        out.append(I("s_cbranch_scc1", ld))
        out.append(I("s_sleep", 2))
        out.append(I("s_add_u32", s(sCnt), s(sCnt), 1))
        out.append(I("s_cmp_lt_u32", s(sCnt), 200000))
        out.append(I("s_cbranch_scc1", lp))
        out.append(Ins("label", ld))
        out.append(I("s_mul_i32", s(sO2), s(sTT), 14 * 256))
        out.append(I("s_add_u32", s(sO2), s(sO2), hex(WS_ST)))
        out.append(I("v_lshlrev_b32", v(vA), 2, v(vL)))
        for j in range(14):
            out.append(I("buffer_load_dword", v(XF + j), v(vA), s(SWS, 4), s(sO2), mods=f"offen offset:{256 * j} sc1"))
        TB = 0
        out.append(I("s_mul_i32", s(sT0), s(sW), 4608))
        out.append(I("v_and_b32", v(vT[0]), 31, v(vL)))
        out.append(I("v_lshrrev_b32", v(vT[1]), 5, v(vL)))
        out.append(I("v_mul_u32_u24", v(vT[0]), 72, v(vT[0])))
        out.append(I("v_lshl_add_u32", v(vT[0]), v(vT[1]), 3, v(vT[0])))
        out.append(I("v_add_u32", v(vT[0]), s(sT0), v(vT[0])))
        out.append(I("v_bfe_u32", v(vT[2]), v(vL), 2, 2))
        out.append(I("v_lshl_add_u32", v(vT[2]), v(vT[1]), 3, v(vT[2])))
        out.append(I("v_mul_u32_u24", v(vT[2]), 72, v(vT[2])))
        out.append(I("v_bfe_u32", v(vT[3]), v(vL), 4, 1))
        out.append(I("v_lshl_add_u32", v(vT[2]), v(vT[3]), 5, v(vT[2])))
        out.append(I("v_and_b32", v(vT[3]), 3, v(vL)))
        out.append(I("v_lshl_add_u32", v(vT[2]), v(vT[3]), 3, v(vT[2])))
        out.append(I("v_add_u32", v(vT[2]), s(sT0), v(vT[2])))
        out.append(I("s_lshl_b32", s(sO0), s(sFT), 7))
        out.append(I("s_lshl_b32", s(sO1), s(sTT), 1))
        out.append(I("s_add_u32", s(sO0), s(sO0), s(sO1)))
        out.append(I("s_lshl_b32", s(sO0), s(sO0), 10))
        out.append(I("s_add_u32", s(sO0), s(sO0), hex(WS_Z2F)))
        out.append(I("s_add_u32", s(sO1), s(sO0), 2 * 128 * 1024))
        for j in range(1, 14):
            out.append(I("v_add_f32", v(XF), v(XF), v(XF + j)))
        out.append(I("v_mov_b32", v(vS2), v(XF)))
        out.append(I("v_mov_b32", v(vS1), v(XF)))
        out.append(I("v_permlane32_swap_b32", v(vS1), v(vS2)))
        out.append(I("v_mul_f32", v(vS1), f32(1.0 / FH), v(vS1)))
        out.append(I("v_mul_f32", v(vS2), f32(1.0 / FH), v(vS2)))
        out.append(I("v_fma_f32", v(vS2), "-" + v(vS1), v(vS1), v(vS2)))
        out.append(I("v_max_f32", v(vS2), 0, v(vS2)))
        out.append(I("v_add_f32", v(vS2), f32(1e-5), v(vS2)))
        out.append(I("v_rsq_f32", v(vR), v(vS2)))
        out.append(I("v_mul_f32", v(vNMR), v(vS1), v(vR)))
        out.append(I("v_sub_f32", v(vNMR), 0, v(vNMR)))
        for pr in range(2):
            for i in range(16):
                out.append(I("v_fma_f32", v(ACC[pr] + i), v(ACC[pr] + i), v(vR), v(vNMR)))
            out += cvt_stream(XF + 16 + 8 * pr, ACC[pr])
            for jj in range(4):
                out.append(I("ds_write_b64", v(vT[0]), v(XF + 16 + 8 * pr + 2 * jj, 2), mods=f"offset:{pr * 2304 + jj * 16}", tok_w=f"tw{pr}"))
        for pr in range(2):
            out.append(need(f"tw{pr}"))
            for m in range(2):
                for t in range(2):
                    out.append(I("ds_read_b64_tr_b16", v(XF + 32 + 8 * pr + 4 * m + 2 * t, 2), v(vT[2]),
                                 mods=f"offset:{pr * 2304 + (16 * m + 4 * t) * 72}"))
        for pr in range(2):
            for m in range(2):
                out.append(I("buffer_store_dwordx4", v(XF + 32 + 8 * pr + 4 * m, 4), v(vL16), s(SWS, 4), s([sO0, sO1][pr]),
                             mods=f"offen offset:{1024 * m}"))
        return out

    def qk_setup():
        out = []
        out.append(I("s_cmp_lt_u32", s(sSLOT), 4))
        out.append(I("s_cselect_b32", s(sScale), f32(QSCALE), "1.0"))
        out.append(I("s_cselect_b32", s(sQKb), hex(WS_QF), hex(WS_KF)))
        return out

    def head_off(base_s):
        out = []
        out.append(I("s_and_b32", s(sO0), s(sSLOT), 3))
        out.append(I("s_lshl_b32", s(sO0), s(sO0), 2))
        out.append(I("s_add_u32", s(sO0), s(sO0), s(sCT)))
        out.append(I("s_lshl_b32", s(sO0), s(sO0), 17))
        out.append(I("s_lshl_b32", s(sO1), s(sTT), 10))
        out.append(I("s_add_u32", s(sO0), s(sO0), s(sO1)))
        out.append(I("s_add_u32", s(sQKb), s(sO0), base_s))
        return out

    def qk_epi(pr):
        out = []
        a = ACC[2 + pr]
        for i in range(16):
            out.append(I("v_mul_f32", v(a + i), s(sScale), v(a + i)))
        out += cvt_stream(PK, a)
        for m in range(2):
            out.append(I("s_add_u32", s(sSo), s(sQKb), hex((pr * 4 + m) * 65536)))
            out.append(I("buffer_store_dwordx4", v(PK + 4 * m, 4), v(vL16), s(SWS, 4), s(sSo), mods="offen"))
        return out

    def v_setup():
        out = []
        out.append(I("v_bfe_u32", v(vA), v(vL), 4, 1))
        out.append(I("v_lshlrev_b32", v(vA), 16, v(vA)))
        out.append(I("v_lshrrev_b32", v(vB), 5, v(vL)))
        out.append(I("v_lshl_add_u32", v(vA), v(vB), 8, v(vA)))
        out.append(I("v_and_b32", v(vB), 15, v(vL)))
        out.append(I("v_lshl_add_u32", v(vR), v(vB), 4, v(vA)))
        return out

    def v_epi(pr):
        out = []
        a = ACC[2 + pr]
        out += cvt_stream(PK, a)
        out.append(I("s_add_u32", s(sSo), s(sQKb), hex(pr * 4 * 65536)))
        for m in range(2):
            out.append(I("buffer_store_dwordx4", v(PK + 4 * m, 4), v(vR), s(SWS, 4), s(sSo), mods=f"offen offset:{512 * m}"))
        return out

    def group1(ztype, qtype):
        aWc = aW.clone()
        RA1 = 4
        main = []
        marks = {}
        for q in range(-RA1, 64):
            qr = q + RA1
            if qr < 64:
                st = 8 + qr // 16
                if qr % 16 == 0:
                    pre = []
                    if ztype == "z2" and st == 10:
                        pre.append(need("stat"))
                    marks[st] = len(main)
                    main += pre + [need(f"st{st}"), I("s_barrier")]
                    if ztype == "z2" and st == 10:
                        main += flag_store()
                base = (st % 5) * SLOT
                main += wread(WF + (qr % 6) * 4, base + (qr % 16) * 2048, aWc)
            if q >= 0:
                pr, kap = divmod(q, 32)
                a = ACC[2 + pr]
                c = "0" if kap == 0 else a
                if qtype == "v":
                    main.append(MFMA(a, XF + 4 * kap, WF + (q % 6) * 4, c))
                else:
                    main.append(MFMA(a, WF + (q % 6) * 4, XF + 4 * kap, c))
                if q == 31:
                    marks["p2end"] = len(main)
        setup = (qk_setup() + head_off(s(sQKb))) if qtype == "qk" else (v_setup() + head_off(hex(WS_VF)))
        epi = qk_epi if qtype == "qk" else v_epi
        side1 = z2_part1() if ztype == "z2" else z1_epi()
        a0 = marks["p2end"] + 10
        main = weave(main, epi(0), a0, len(main) - 4)
        main = weave(main, side1, 12, marks[10])
        p.add(setup)
        p.add(main)
        p.add(epi(1))
        if ztype == "z2":
            p("s_barrier")
            p.add(z2_part2())
        p("s_endpgm")

    p.label("K1_CLS_A")
    group1("z2", "qk")
    p.label("K1_CLS_C")
    group1("z1", "qk")
    p.label("K1_CLS_D")
    group1("z1", "v")
    p.label("K1_CLS_E")
    p.add(z1_epi())
    p("s_cmp_lg_u32", s(sSLOT), 12)
    p("s_cbranch_scc1", "K1_END")
    p("s_cmp_lg_u32", s(sCT), 0)
    p("s_cbranch_scc1", "K1_END")
    p("v_lshrrev_b32", v(vA), 5, v(vL))
    p("v_lshlrev_b32", v(vA), 4, v(vA))
    GA = ACC[0]
    for b in range(4):
        for j in range(8):
            p("buffer_load_dwordx4", v(ACC[2] + 4 * j, 4), v(vA), s(SGW, 4), "0", mods=f"offen offset:{32 * (8 * b + j)}")
        for j in range(8):
            kap = 8 * b + j
            p.add(MFMA(GA, ACC[2] + 4 * j, XF + 4 * kap, "0" if kap == 0 else GA))
    p("v_mul_f32", v(vA), f32(-LOG2E), v(GA))
    p("v_exp_f32", v(vA), v(vA))
    p("v_add_f32", v(vA), "1.0", v(vA))
    p("v_rcp_f32", v(vA), v(vA))
    p("v_and_b32", v(vB), 31, v(vL))
    p("v_lshlrev_b32", v(vB), 2, v(vB))
    p("s_lshl_b32", s(sO0), s(sTT), 7)
    p("s_add_u32", s(sO0), s(sO0), hex(WS_G))
    p("buffer_store_dword", v(vA), v(vB), s(SWS, 4), s(sO0), mods="offen")
    p.label("K1_END")
    p("s_endpgm")
    return kernel_text(name, p.finish())
```

```python
from common import *

K2_WGS = 256
SLOTB = 26624
K2_LDS = 65536 + 2 * SLOTB
OFF_K = 16384
OFF_V = 20480
OFF_ONE = 24576


def k2(name):
    p = Prog()
    SWS, SWSP, SBSP = 40, 44, 48
    sW, sQP, sKH, sHEAD, sQB, sTB, sFB, sT0, sT1, sT2 = 64, 65, 66, 67, 68, 69, 70, 71, 72, 73
    sMa, sMb, sSoW, sSoKV, sSoZ, sIt, sIdx = 74, 75, 76, 77, 78, 79, 80
    sO0, sO1, sO2, sO3, sX = 81, 82, 84, 85, 83
    sTT, sTS = 86, 87
    va = Alloc(1, 256)
    vL, vL16, vK, vV, vD0, vD1, vDKV, vA, vB, vC, vG, vGs, vBs = [va() for _ in range(13)]
    vWs = [va() for _ in range(4)]
    Q = [va(4, 4), va(4, 4)]
    KFr = [va(4, 4), va(4, 4)]
    VFr = [va(8, 4), va(8, 4)]
    P = va(8, 4)
    WF = [[va(4, 4), va(4, 4)], [va(4, 4), va(4, 4)]]
    NM = [va(16, 4), va(16, 4)]
    Sb = [va(16, 4), va(16, 4)]
    O = [va(16, 4), va(16, 4)]
    G = [va(16, 4), va(16, 4)]
    ZF = va(32, 4)
    Z1 = va(8, 4)

    p("s_cmp_ge_u32", s(2), K2_WGS)
    p("s_cbranch_scc1", "K2_END")
    load_kernargs(p)
    p("v_and_b32", v(vL), 63, v(0))
    p("v_lshrrev_b32", v(vA), 6, v(0))
    p("v_readfirstlane_b32", s(sW), v(vA))
    p("s_and_b32", s(sT0), s(2), 7)
    p("s_lshr_b32", s(sIdx), s(2), 3)
    p("s_and_b32", s(sT1), s(sIdx), 3)
    p("s_lshl_b32", s(sHEAD), s(sT0), 2)
    p("s_add_u32", s(sHEAD), s(sHEAD), s(sT1))
    p("s_mov_b32", s(sTB), s(sHEAD))
    p("s_lshr_b32", s(sQB), s(sIdx), 2)
    p("s_mov_b32", s(sFB), s(sQB))
    p("s_and_b32", s(sQP), s(sW), 3)
    p("s_lshr_b32", s(sKH), s(sW), 2)
    p("v_lshlrev_b32", v(vL16), 4, v(vL))
    p("v_lshrrev_b32", v(vA), 3, v(vL))
    p("v_lshrrev_b32", v(vB), 4, v(vL))
    p("v_and_b32", v(vC), 7, v(vL))
    p("v_xor_b32", v(vC), v(vC), v(vB))
    p("v_lshlrev_b32", v(vC), 4, v(vC))
    p("s_lshl_b32", s(sT0), s(sTB), 6)
    p("s_lshl_b32", s(sT1), s(sQP), 4)
    p("s_add_u32", s(sT0), s(sT0), s(sT1))
    p("v_add_u32", v(vA), s(sT0), v(vA))
    p("v_lshlrev_b32", v(vA), 12, v(vA))
    p("s_lshl_b32", s(sT0), s(sKH), 11)
    p("v_add3_u32", v(vD0), v(vA), v(vC), s(sT0))
    p("v_xor_b32", v(vD1), 64, v(vD0))
    p("v_add_u32", v(vD1), 8 * 4096, v(vD1))
    p("s_lshl_b32", s(sT0), s(sKH), 21)
    p("s_add_u32", s(sT0), s(sT0), hex(WS_KF))
    p("s_lshl_b32", s(sT1), s(sHEAD), 16)
    p("s_add_u32", s(sT0), s(sT0), s(sT1))
    p("s_bfe_u32", s(sT1), s(sW), "0x10001")
    p("s_lshl_b32", s(sT1), s(sT1), 15)
    p("s_add_u32", s(sT0), s(sT0), s(sT1))
    p("s_and_b32", s(sT1), s(sW), 1)
    p("s_lshl_b32", s(sT1), s(sT1), 10)
    p("s_add_u32", s(sT0), s(sT0), s(sT1))
    p("v_add_u32", v(vDKV), s(sT0), v(vL16))
    p("s_lshl_b32", s(sMa), s(sW), 11)
    p("s_lshl_b32", s(sMb), s(sW), 10)
    p("s_add_u32", s(sMb), s(sMb), OFF_K)
    p("s_mov_b32", s(sSoW), 0)
    p("s_mov_b32", s(sSoKV), 0)
    p("s_lshl_b32", s(sT0), s(sFB), 2)
    p("s_add_u32", s(sT0), s(sT0), s(sQP))
    p("s_lshl_b32", s(sT0), s(sT0), 1)
    p("s_add_u32", s(sT0), s(sT0), s(sKH))
    p("s_lshl_b32", s(sT0), s(sT0), 16)
    p("s_add_u32", s(sSoZ), s(sT0), hex(WS_Z2F))
    p("s_lshl_b32", s(sTT), s(sQB), 3)
    p("s_lshl_b32", s(sT0), s(sQP), 1)
    p("s_add_u32", s(sTT), s(sTT), s(sT0))
    srd(p, SWS, KA_WS, WS_BYTES)
    srd(p, SWSP, KA_WSP, S * S * 2)
    srd(p, SBSP, KA_BSP, S * 2)

    def dma_step(par, tok, spatial):
        out = []
        out += dma(None, vDKV, SWS, sSoKV, par * SLOTB, tok, m0_base=sMb)
        out.append(I("s_add_u32", s(sSoKV), s(sSoKV), 2048))
        if spatial:
            out += dma(None, vD0, SWSP, sSoW, par * SLOTB, tok, m0_base=sMa)
            out += dma(None, vD1, SWSP, sSoW, par * SLOTB + 1024, tok, m0_base=sMa)
            out.append(I("s_add_u32", s(sSoW), s(sSoW), 128))
        return out

    def m_toggle():
        return [I("s_xor_b32", s(sMa), s(sMa), "0x10000"), I("s_xor_b32", s(sMb), s(sMb), "0x10000")]

    def zload(slot8, imm):
        return I("buffer_load_dwordx4", v(ZF + 4 * slot8, 4), v(vL16), s(SWS, 4), s(sSoZ), mods=f"offen offset:{imm}")

    def common_pro2():
        out = []
        out.append(I("s_lshl_b32", s(sT0), s(sHEAD), 16))
        out.append(I("s_lshl_b32", s(sT1), s(sTT), 10))
        out.append(I("s_add_u32", s(sT0), s(sT0), s(sT1)))
        if WS_QF:
            out.append(I("s_add_u32", s(sT0), s(sT0), hex(WS_QF)))
        out.append(I("buffer_load_dwordx4", v(Q[0], 4), v(vL16), s(SWS, 4), s(sT0), mods="offen"))
        out.append(I("buffer_load_dwordx4", v(Q[1], 4), v(vL16), s(SWS, 4), s(sT0), mods="offen offset:1024"))
        return out

    def addr_setup():
        out = []
        out.append(I("v_lshrrev_b32", v(vA), 7, v(0)))
        out.append(I("v_and_b32", v(vB), 1, v(vA)))
        out.append(I("v_mul_u32_u24", v(vB), SLOTB, v(vB)))
        out.append(I("v_lshrrev_b32", v(vA), 1, v(vA)))
        out.append(I("v_lshl_add_u32", v(vB), v(vA), 16, v(vB)))
        out.append(I("v_and_b32", v(vA), 127, v(0)))
        out.append(I("v_lshl_add_u32", v(vB), v(vA), 4, v(vB)))
        for i in range(4):
            out.append(I("v_mov_b32", v(P + i), "0x3f803f80"))
        out.append(I("ds_write_b128", v(vB), v(P, 4), mods=f"offset:{OFF_ONE}", tok_w="ones"))
        out.append(I("s_lshl_b32", s(sT0), s(sKH), 11))
        out.append(I("v_add_u32", v(vK), s(sT0), v(vL16)))
        out.append(I("v_lshrrev_b32", v(vA), 5, v(vL)))
        out.append(I("v_and_b32", v(vB), 15, v(vL)))
        out.append(I("v_lshlrev_b32", v(vB), 4, v(vB)))
        out.append(I("v_lshl_add_u32", v(vB), v(vA), 8, v(vB)))
        out.append(I("v_bfe_u32", v(vA), v(vL), 4, 1))
        out.append(I("s_sub_u32", s(sT1), OFF_ONE - OFF_V, s(sT0)))
        out.append(I("v_mul_u32_u24", v(vA), s(sT1), v(vA)))
        out.append(I("v_add3_u32", v(vV), v(vA), v(vB), s(sT0)))
        out.append(I("v_and_b32", v(vA), 31, v(vL)))
        out.append(I("v_lshrrev_b32", v(vB), 5, v(vL)))
        out.append(I("v_bfe_u32", v(vC), v(vA), 1, 3))
        out.append(I("v_xor_b32", v(vC), v(vC), v(vB)))
        out.append(I("v_lshlrev_b32", v(vC), 4, v(vC)))
        out.append(I("v_lshlrev_b32", v(vA), 7, v(vA)))
        out.append(I("s_lshl_b32", s(sT0), s(sKH), 13))
        out.append(I("v_add3_u32", v(vWs[0]), v(vA), v(vC), s(sT0)))
        for ks in range(1, 4):
            out.append(I("v_xor_b32", v(vWs[ks]), 32 * ks, v(vWs[0])))
        for r in list(range(O[0], O[0] + 16)) + list(range(O[1], O[1] + 16)) + list(range(G[0], G[0] + 16)) + \
                list(range(G[1], G[1] + 16)) + list(range(VFr[1], VFr[1] + 8)) + [P + 4, P + 5]:
            out.append(I("v_mov_b32", v(r), 0))
        return out

    E = lambda r: I("v_exp_f32", v(r), v(r))
    C = lambda d, r: I("v_cvt_pk_bf16_f32", v(d), v(r), v(r + 1))

    def kread(par, j):
        return I("ds_read_b128", v(KFr[j], 4), v(vK), mods=f"offset:{par * SLOTB + OFF_K + j * 1024}")

    def vread(par, j, m):
        return I("ds_read_b128", v(VFr[j] + 4 * m, 4), v(vV), mods=f"offset:{par * SLOTB + OFF_V + j * 1024 + m * 512}")

    def wread(par, ks, tt):
        return I("ds_read_b128", v(WF[ks & 1][tt], 4), v(vWs[ks]), mods=f"offset:{par * SLOTB + tt * 4096}")

    def tog(r):
        return I("v_xor_b32", v(r), "0x10000", v(r))

    def tile(n, tau, spatial, last_step, nsteps_known):
        par = n & 1
        j, q = tau >> 1, tau & 1
        cur, prv = Sb[q], Sb[1 - q]
        jp = j if q == 1 else 1 - j
        qp_ = 1 - q
        is_last_tile = last_step and tau == 3
        jn = j if q == 0 else 1 - j
        qk = None if is_last_tile else MFMA(prv, KFr[jn], Q[1 - q], NM[1 - q])
        pv1 = MFMA(O[qp_], VFr[jp] + 4, P + 4, O[qp_])
        pv0 = MFMA(O[q], VFr[j], P, O[q])
        k8 = (4 * par + tau)
        x0 = MFMA(G[0], ZF + 4 * k8, WF[tau & 1][0], G[0]) if spatial else None
        x1 = MFMA(G[1], ZF + 4 * k8, WF[tau & 1][1], G[1]) if spatial else None
        pre = []
        sideA = []
        sideB = []
        sideC = []
        nxt_ok = not last_step
        npar = 1 - par
        if tau == 0:
            sideA.append(kread(par, 1))
            if spatial:
                sideB += [wread(par, 1, 0), wread(par, 1, 1)]
                if par == 1:
                    sideC.append(tog(vWs[1]))
        elif tau == 1:
            sideA += [vread(par, 1, 0), vread(par, 1, 1)]
            if spatial:
                sideB += [wread(par, 2, 0), wread(par, 2, 1)]
                if par == 1:
                    sideC.append(tog(vWs[2]))
        elif tau == 2:
            if nxt_ok:
                pre += [need(f"slot{(n + 1) & 1}"), I("s_barrier")]
                if par == 1:
                    pre.append(tog(vK))
                sideA.append(kread(npar, 0))
                dm = nsteps_known is None or n + 3 <= 15
                if dm:
                    sideC += dma_step(npar, f"slot{npar}", spatial)
                if par == 0:
                    sideC += m_toggle()
            if spatial:
                sideB += [wread(par, 3, 0), wread(par, 3, 1)]
                if par == 1:
                    sideC.append(tog(vWs[3]))
        elif tau == 3:
            if nxt_ok:
                if par == 1:
                    pre.append(tog(vV))
                    if spatial:
                        pre.append(tog(vWs[0]))
                sideA += [vread(npar, 0, 0), vread(npar, 0, 1)]
                if spatial:
                    sideB += [wread(npar, 0, 0), wread(npar, 0, 1)]
        if spatial and (nsteps_known is None or 4 * n + tau + 8 <= 63):
            sideC.append(zload(k8, 1024 * tau))
            if tau == 3:
                sideC.append(I("s_add_u32", s(sSoZ), s(sSoZ), 4096))
        seq = pre + [E(cur + 0), E(cur + 1), C(P + 6, prv + 12), C(P + 7, prv + 14), qk, E(cur + 2), E(cur + 3), pv1] + sideA + \
            [E(cur + 4), E(cur + 5), C(P + 0, cur + 0), C(P + 1, cur + 2), E(cur + 6), E(cur + 7), x0] + \
            [E(cur + 8), E(cur + 9), C(P + 2, cur + 4), C(P + 3, cur + 6), E(cur + 10), E(cur + 11), pv0] + sideB + \
            [E(cur + 12), E(cur + 13), C(P + 4, cur + 8), C(P + 5, cur + 10), x1, E(cur + 14), E(cur + 15)] + sideC
        return [x for x in seq if x is not None]

    def variant(spatial, tag):
        npc = 3 if spatial else 1
        p.add(dma_step(0, "slot0", spatial))
        p.add(common_pro2())
        p.add(dma_step(1, "slot1", spatial))
        p.add(m_toggle())
        if spatial:
            for k in range(8):
                p.add(zload(k, 1024 * (k & 3)))
                if k & 3 == 3:
                    p("s_add_u32", s(sSoZ), s(sSoZ), 4096)
        p.add(addr_setup())
        p.add([need("slot0", "ones"), I("s_barrier")])
        p.add(dma_step(0, "slot0", spatial))
        p("ds_read_b128", v(KFr[1], 4), v(vL16), mods=f"offset:{OFF_K}")
        p.add(kread(0, 0))
        p.add([vread(0, 0, 0), vread(0, 0, 1)])
        if spatial:
            p.add([wread(0, 0, 0), wread(0, 0, 1)])
        for q in range(2):
            p.add(MFMA(Sb[q], KFr[1], Q[q], "0"))
        for q in range(2):
            t = [vA, vB][q]
            p("v_max3_f32", v(t), v(Sb[q]), v(Sb[q] + 1), v(Sb[q] + 2))
            for i in range(3, 15, 2):
                p("v_max3_f32", v(t), v(t), v(Sb[q] + i), v(Sb[q] + i + 1))
            p("v_max_f32", v(t), v(t), v(Sb[q] + 15))
            p("v_mov_b32", v(vC), v(t))
            p("v_permlane32_swap_b32", v(t), v(vC))
            p("v_max_f32", v(t), v(t), v(vC))
            for i in range(16):
                p("v_sub_f32", v(NM[q] + i), 0, v(t))
        for i in range(12, 16):
            p("v_mov_b32", v(Sb[1] + i), 0)
        p.add(MFMA(Sb[0], KFr[0], Q[0], NM[0]))
        p("s_mov_b32", s(sIt), 0)

        def body(i):
            out = []
            for par in range(2):
                n = par if i is None else 2 * i + par
                for tau in range(4):
                    out += tile(n, tau, spatial, (i == 7 and par == 1), i)
            return out

        lab = f"K2_LOOP_{tag}"
        p.label(lab)
        p.add(body(None))
        p("s_add_u32", s(sIt), s(sIt), 1)
        p("s_cmp_lt_u32", s(sIt), 6)
        p("s_cbranch_scc1", lab)
        p.add(body(6))
        p.add(epi_loads(spatial))
        p.add(body(7))
        p.add([C(P + 6, Sb[1] + 12), C(P + 7, Sb[1] + 14), MFMA(O[1], VFr[1] + 4, P + 4, O[1])])
        epilogue(spatial, tag)

    def epi_loads(spatial):
        out = []
        out.append(I("s_add_u32", s(sTT), s(sTT), s(sKH)))
        out.append(I("v_and_b32", v(vA), 31, v(vL)))
        out.append(I("v_lshlrev_b32", v(vB), 2, v(vA)))
        out.append(I("s_lshl_b32", s(sT0), s(sTT), 7))
        out.append(I("s_add_u32", s(sT0), s(sT0), hex(WS_G)))
        out.append(I("buffer_load_dword", v(vG), v(vB), s(SWS, 4), s(sT0), mods="offen"))
        if spatial:
            out.append(I("s_lshl_b32", s(sTS), s(sTB), 1))
            out.append(I("s_add_u32", s(sTS), s(sTS), s(sKH)))
            out.append(I("s_lshl_b32", s(sT0), s(sTS), 7))
            out.append(I("s_add_u32", s(sT0), s(sT0), hex(WS_G)))
            out.append(I("buffer_load_dword", v(vGs), v(vB), s(SWS, 4), s(sT0), mods="offen"))
            out.append(I("v_lshlrev_b32", v(vB), 1, v(vA)))
            out.append(I("s_lshl_b32", s(sT0), s(sTS), 6))
            out.append(I("buffer_load_ushort", v(vBs), v(vB), s(SBSP, 4), s(sT0), mods="offen"))
            out.append(I("s_lshl_b32", s(sX), s(sFB), 2))
            out.append(I("s_add_u32", s(sX), s(sX), s(sQP)))
            out.append(I("s_mul_i32", s(sT0), s(sTS), 28))
            out.append(I("s_add_u32", s(sT0), s(sT0), s(sX)))
            out.append(I("s_lshl_b32", s(sT0), s(sT0), 11))
            out.append(I("s_add_u32", s(sT0), s(sT0), hex(WS_Z1F)))
            for m in range(2):
                out.append(I("buffer_load_dwordx4", v(Z1 + 4 * m, 4), v(vL16), s(SWS, 4), s(sT0), mods=f"offen offset:{1024 * m}"))
        return out

    def epilogue(spatial, tag):
        lab = f"K2_NOSWAP_{tag}"
        p("s_cmp_eq_u32", s(sKH), 0)
        p("s_cbranch_scc1", lab)
        if spatial:
            for i in range(16):
                p("v_swap_b32", v(G[0] + i), v(G[1] + i))
        for i in range(9):
            p("v_swap_b32", v(O[0] + i), v(O[1] + i))
        for i in range(4):
            p("v_mov_b32", v(Q[0] + i), v(Q[1] + i))
        p.label(lab)
        p("s_mul_i32", s(sT0), s(sW), 7168)
        p("v_add_u32", v(vA), s(sT0), v(vL16))
        p("s_xor_b32", s(sT1), s(sW), 4)
        p("s_mul_i32", s(sT1), s(sT1), 7168)
        p("v_add_u32", v(vB), s(sT1), v(vL16))
        if spatial:
            for c in range(4):
                p("ds_write_b128", v(vA), v(G[1] + 4 * c, 4), mods=f"offset:{(3 + c) * 1024}", tok_w="xw")
        for c in range(3):
            p("ds_write_b128", v(vA), v(O[1] + 4 * c, 4), mods=f"offset:{c * 1024}", tok_w="xw")
        p.add([need("xw"), I("s_barrier")])
        for c in range(3):
            p("ds_read_b128", v(Sb[0] + 4 * c, 4), v(vB), mods=f"offset:{c * 1024}")
        if spatial:
            for c in range(4):
                p("ds_read_b128", v(Sb[1] + 4 * c, 4), v(vB), mods=f"offset:{(3 + c) * 1024}")
        p("s_mul_i32", s(sO0), s(sTT), 88)
        p("s_add_u32", s(sO0), s(sO0), s(sHEAD))
        p("s_lshl_b32", s(sO0), s(sO0), 10)
        p("s_add_u32", s(sO0), s(sO0), hex(WS_AF))
        for i in range(9):
            p("v_add_f32", v(O[0] + i), v(O[0] + i), v(Sb[0] + i))
        p("v_add_f32", v(vA), f"abs({v(O[0])})", f"abs({v(O[0] + 1)})")
        for i in range(2, 8):
            p("v_add_f32", v(vA), v(vA), f"abs({v(O[0] + i)})")
        p("v_mov_b32", v(vB), f32(2.0 ** 126))
        p("v_cmp_nlt_f32", "vcc", v(vA), v(vB))
        p("v_mov_b32", v(vB), f32(2.0 ** 100))
        p("v_cmp_nlt_f32", s(sO2, 2), v(O[0] + 8), v(vB))
        p("s_or_b64", "vcc", "vcc", s(sO2, 2))
        p("v_mov_b32", v(vB), f32(2.0 ** -100))
        p("v_cmp_ngt_f32", s(sO2, 2), v(O[0] + 8), v(vB))
        p("s_or_b64", "vcc", "vcc", s(sO2, 2))
        p("s_cmp_lg_u64", "vcc", 0)
        p("s_cbranch_scc1", f"K2_FB_{tag}")
        p.label(f"K2_FBRET_{tag}")
        p("v_rcp_f32", v(vA), v(O[0] + 8))
        p("v_mul_f32", v(vA), v(vA), v(vG))
        for i in range(8):
            p("v_mul_f32", v(O[0] + i), v(O[0] + i), v(vA))
        for i in range(4):
            p.add(C(P + i, O[0] + 2 * i))
        p("buffer_store_dwordx4", v(P, 4), v(vL16), s(SWS, 4), s(sO0), mods="offen")
        if spatial:
            p("s_mul_i32", s(sO1), s(sTS), 88)
            p("s_lshl_b32", s(sT0), s(sX), 1)
            p("s_add_u32", s(sO1), s(sO1), s(sT0))
            p("s_add_u32", s(sO1), s(sO1), 32)
            p("s_lshl_b32", s(sO1), s(sO1), 10)
            p("s_add_u32", s(sO1), s(sO1), hex(WS_AF))
            p("v_lshlrev_b32", v(vBs), 16, v(vBs))
            p("v_sub_f32", v(vGs), "1.0", v(vGs))
            for i in range(16):
                p("v_add_f32", v(G[0] + i), v(G[0] + i), v(Sb[1] + i))
            for i in range(16):
                p("v_add_f32", v(G[0] + i), v(G[0] + i), v(vBs))
            for i in range(8):
                p("v_lshlrev_b32", v(NM[0] + 2 * i), 16, v(Z1 + i))
                p("v_and_b32", v(NM[0] + 2 * i + 1), "0xffff0000", v(Z1 + i))
            for i in range(16):
                p("v_mul_f32", v(G[0] + i), v(G[0] + i), v(vGs))
            for i in range(16):
                p("v_mul_f32", v(G[0] + i), v(G[0] + i), v(NM[0] + i))
            for i in range(8):
                p.add(C(Z1 + i, G[0] + 2 * i))
            for m in range(2):
                p("buffer_store_dwordx4", v(Z1 + 4 * m, 4), v(vL16), s(SWS, 4), s(sO1), mods=f"offen offset:{1024 * m}")
        p("s_endpgm")
        p.label(f"K2_FB_{tag}")
        sKo, sVo = sO2, sO3
        p("s_lshl_b32", s(sT0), s(sHEAD), 16)
        p("s_add_u32", s(sKo), s(sT0), hex(WS_KF))
        p("v_mov_b32", v(vA), "0xff800000")
        p("s_mov_b32", s(sIt), 0)
        l1 = f"K2_FB1_{tag}"
        p.label(l1)
        p("buffer_load_dwordx4", v(KFr[0], 4), v(vL16), s(SWS, 4), s(sKo), mods="offen")
        p.add(MFMA(Sb[0], KFr[0], Q[0], "0"))
        for i in range(0, 16, 2):
            p("v_max3_f32", v(vA), v(vA), v(Sb[0] + i), v(Sb[0] + i + 1))
        p("s_add_u32", s(sKo), s(sKo), 1024)
        p("s_add_u32", s(sIt), s(sIt), 1)
        p("s_cmp_lt_u32", s(sIt), 64)
        p("s_cbranch_scc1", l1)
        p("v_mov_b32", v(vC), v(vA))
        p("v_permlane32_swap_b32", v(vA), v(vC))
        p("v_max_f32", v(vA), v(vA), v(vC))
        for i in range(16):
            p("v_sub_f32", v(NM[1] + i), 0, v(vA))
            p("v_mov_b32", v(O[0] + i), 0)
        p("v_lshrrev_b32", v(vA), 5, v(vL))
        p("v_and_b32", v(vB), 15, v(vL))
        p("v_lshlrev_b32", v(vB), 4, v(vB))
        p("v_lshl_add_u32", v(vB), v(vA), 8, v(vB))
        p("v_bfe_u32", v(vA), v(vL), 4, 1)
        p("v_lshl_add_u32", v(vB), v(vA), 30, v(vB))
        p("v_mul_u32_u24", v(vC), "0x3f80", v(vA))
        p("v_lshl_add_u32", v(vC), v(vC), 16, v(vC))
        p("s_add_u32", s(sKo), s(sT0), hex(WS_KF))
        p("s_add_u32", s(sVo), s(sT0), hex(WS_VF))
        p("s_mov_b32", s(sIt), 0)
        l2 = f"K2_FB2_{tag}"
        p.label(l2)
        p("buffer_load_dwordx4", v(KFr[0], 4), v(vL16), s(SWS, 4), s(sKo), mods="offen")
        p("buffer_load_dwordx4", v(VFr[0], 4), v(vB), s(SWS, 4), s(sVo), mods="offen")
        p("buffer_load_dwordx4", v(VFr[0] + 4, 4), v(vB), s(SWS, 4), s(sVo), mods="offen offset:512")
        p.add(MFMA(Sb[0], KFr[0], Q[0], NM[1]))
        for i in range(8):
            p("v_or_b32", v(VFr[0] + i), v(VFr[0] + i), v(vC))
        for i in range(16):
            p.add(E(Sb[0] + i))
        for i in range(8):
            p.add(C(P + i, Sb[0] + 2 * i))
        p.add(MFMA(O[0], VFr[0], P, O[0]))
        p.add(MFMA(O[0], VFr[0] + 4, P + 4, O[0]))
        p("s_add_u32", s(sKo), s(sKo), 1024)
        p("s_add_u32", s(sVo), s(sVo), 1024)
        p("s_add_u32", s(sIt), s(sIt), 1)
        p("s_cmp_lt_u32", s(sIt), 64)
        p("s_cbranch_scc1", l2)
        p("s_branch", f"K2_FBRET_{tag}")

    p("s_cmp_ge_u32", s(sIdx), 28)
    p("s_cbranch_scc1", "K2_NOSP")
    variant(True, "S")
    p.label("K2_NOSP")
    variant(False, "N")
    p.label("K2_END")
    p("s_endpgm")
    return kernel_text(name, p.finish())
```

```python
from common import *
from k1 import LdsAddr

K3_WGS = 256
K3_LDS = 163840


def k3(name):
    p = Prog()
    SWS, SWO, SWOUT, SOUT = 40, 44, 48, 52
    sW, sTI, sNI, sKH, sTB, sNB, sT0, sT1, sT2, sSo = 64, 65, 66, 67, 68, 69, 70, 71, 72, 73
    sW1k, sAo, sNc = 74, 75, 76
    va = Alloc(1, 128)
    vL, vL16, vWs, vAs, vAr, vWr, vA, vB, vC, vD = [va() for _ in range(10)]
    NB = 4
    AFr = va(4 * NB, 4)
    WFr = va(4 * NB, 4)
    ACC = va(16, 4)
    R = va(16, 4)

    p("s_cmp_ge_u32", s(2), K3_WGS)
    p("s_cbranch_scc1", "K3_END")
    load_kernargs(p)
    p("v_and_b32", v(vL), 63, v(0))
    p("v_lshrrev_b32", v(vA), 6, v(0))
    p("v_readfirstlane_b32", s(sW), v(vA))
    p("s_and_b32", s(sT0), s(2), 7)
    p("s_lshr_b32", s(sT1), s(2), 3)
    p("s_and_b32", s(sT2), s(sT1), 3)
    p("s_lshl_b32", s(sTB), s(sT0), 2)
    p("s_add_u32", s(sTB), s(sTB), s(sT2))
    p("s_lshr_b32", s(sNB), s(sT1), 2)
    p("s_and_b32", s(sTI), s(sW), 1)
    p("s_bfe_u32", s(sNI), s(sW), "0x10001")
    p("s_lshr_b32", s(sKH), s(sW), 2)
    p("v_lshlrev_b32", v(vL16), 4, v(vL))
    p("v_lshrrev_b32", v(vA), 3, v(vL))
    p("v_bfe_u32", v(vB), v(vL), 4, 1)
    p("v_lshlrev_b32", v(vB), 2, v(vB))
    p("v_and_b32", v(vC), 7, v(vL))
    p("v_xor_b32", v(vC), v(vC), v(vB))
    p("v_lshlrev_b32", v(vC), 4, v(vC))
    p("s_lshl_b32", s(sT0), s(sW), 3)
    p("v_add_u32", v(vA), s(sT0), v(vA))
    p("v_lshl_add_u32", v(vWs), v(vA), 10, v(vC))
    p("s_lshl_b32", s(sNc), s(sNB), 7)
    p("s_lshl_b32", s(sT0), s(sTB), 1)
    p("s_add_u32", s(sT0), s(sT0), s(sKH))
    p("s_mul_i32", s(sT0), s(sT0), 88)
    p("s_and_b32", s(sT1), s(sW), 3)
    p("s_add_u32", s(sT0), s(sT0), s(sT1))
    p("s_lshl_b32", s(sT0), s(sT0), 10)
    p("s_add_u32", s(sAo), s(sT0), hex(WS_AF))
    p("s_lshl_b32", s(sW1k), s(sW), 10)
    srd(p, SWS, KA_WS, WS_BYTES)
    srd(p, SWO, KA_WO, 512 * 512 * 2)
    srd(p, SWOUT, KA_WOUT, 896 * 512 * 2)
    srd(p, SOUT, KA_OUT, S * D * 2)
    SLOT = 32768

    def dma_step(st):
        out = []
        base = (st % 5) * SLOT
        tok = f"st{st}"
        for kh in range(2):
            ch = st + 11 * kh
            out.append(I("s_add_u32", s(sSo), s(sAo), ch * 4096))
            out += dma(None, vL16, SWS, sSo, base + kh * 16384, tok, m0_base=sW1k)
            if ch < 8:
                out.append(I("s_add_u32", s(sSo), s(sNc), ch * 65536))
                out += dma(None, vWs, SWO, sSo, base + kh * 16384 + 8192, tok, m0_base=sW1k)
            else:
                out.append(I("s_add_u32", s(sSo), s(sNc), (ch - 8) * 65536))
                out += dma(None, vWs, SWOUT, sSo, base + kh * 16384 + 8192, tok, m0_base=sW1k)
        return out

    for st in range(5):
        p.add(dma_step(st))
    p("s_lshl_b32", s(sT0), s(sKH), 14)
    p("s_lshl_b32", s(sT1), s(sTI), 12)
    p("s_add_u32", s(sT1), s(sT1), s(sT0))
    p("v_add_u32", v(vAr), s(sT1), v(vL16))
    p("v_lshrrev_b32", v(vB), 5, v(vL))
    p("v_bfe_u32", v(vA), v(vL), 2, 2)
    p("v_lshl_add_u32", v(vC), v(vB), 2, v(vA))
    p("v_lshlrev_b32", v(vC), 7, v(vC))
    p("v_lshrrev_b32", v(vA), 1, v(vA))
    p("v_xor_b32", v(vA), s(sNI), v(vA))
    p("v_lshl_add_u32", v(vC), v(vA), 6, v(vC))
    p("v_bfe_u32", v(vA), v(vL), 4, 1)
    p("v_lshl_add_u32", v(vC), v(vA), 5, v(vC))
    p("v_and_b32", v(vA), 3, v(vL))
    p("v_lshl_add_u32", v(vC), v(vA), 3, v(vC))
    p("s_add_u32", s(sT0), s(sT0), 8192)
    p("v_add_u32", v(vWr), s(sT0), v(vC))
    aA = LdsAddr(vAr)
    aW = LdsAddr(vWr)
    RA = 3
    for kap in range(-RA, 44):
        kr = kap + RA
        if kr < 44:
            st, ks = divmod(kr, 4)
            base = (st % 5) * SLOT
            if ks == 0:
                p.add([need(f"st{st}"), I("s_waitcnt", "lgkmcnt(0)"), I("s_barrier")])
                if st >= 1 and st + 4 < 11:
                    p.add(dma_step(st + 4))
            pre, imm = aA.at(base + ks * 1024)
            p.add(pre)
            p("ds_read_b128", v(AFr + 4 * (kr % NB), 4), v(vAr), mods=f"offset:{imm}")
            pre, imm = aW.at(base + ks * 2048, 1024)
            p.add(pre)
            p("ds_read_b64_tr_b16", v(WFr + 4 * (kr % NB), 2), v(vWr), mods=f"offset:{imm}")
            p("ds_read_b64_tr_b16", v(WFr + 4 * (kr % NB) + 2, 2), v(vWr), mods=f"offset:{imm + 1024}")
        if kap >= 0:
            p.add(MFMA(ACC, WFr + 4 * (kap % NB), AFr + 4 * (kap % NB), "0" if kap == 0 else ACC))
    EB = SLOT
    PITCH = 272
    IMG = 64 * PITCH
    p("v_and_b32", v(vA), 31, v(vL))
    p("s_lshl_b32", s(sT0), s(sTI), 5)
    p("v_add_u32", v(vA), s(sT0), v(vA))
    p("v_mul_u32_u24", v(vA), PITCH, v(vA))
    p("v_lshrrev_b32", v(vB), 5, v(vL))
    p("v_lshl_add_u32", v(vA), v(vB), 4, v(vA))
    p("s_mul_i32", s(sT0), s(sKH), IMG)
    p("s_lshl_b32", s(sT1), s(sNI), 7)
    p("s_add_u32", s(sT0), s(sT0), s(sT1))
    p("v_add_u32", v(vA), s(sT0), v(vA))
    p("v_lshrrev_b32", v(vB), 3, v(0))
    p("v_and_b32", v(vC), 7, v(0))
    p("v_mul_u32_u24", v(vD), PITCH, v(vB))
    p("v_lshl_add_u32", v(vD), v(vC), 5, v(vD))
    p("v_lshlrev_b32", v(vB), 10, v(vB))
    p("v_lshl_add_u32", v(vB), v(vC), 4, v(vB))
    p("s_lshl_b32", s(sT0), s(sTB), 16)
    p("s_add_u32", s(sT0), s(sT0), s(sNc))
    for j in range(4):
        p("ds_write_b128", v(vA), v(ACC + 4 * j, 4), mods=f"offset:{EB + 32 * j}", tok_w="xw")
    p.add([need("xw"), I("s_barrier")])
    for kh in range(2):
        for c in range(2):
            p("ds_read_b128", v(R + 8 * kh + 4 * c, 4), v(vD), mods=f"offset:{EB + kh * IMG + 16 * c}")
    for i in range(8):
        p("v_add_f32", v(R + i), v(R + i), v(R + 8 + i))
    for i in range(4):
        p("v_cvt_pk_bf16_f32", v(R + 8 + i), v(R + 2 * i), v(R + 2 * i + 1))
    p("buffer_store_dwordx4", v(R + 8, 4), v(vB), s(SOUT, 4), s(sT0), mods="offen")
    p.label("K3_END")
    p("s_endpgm")
    return kernel_text(name, p.finish(), vgprs=128)
```

```python
import sys
sys.path.insert(0, "gen")
from common import *
import k1, k2, k3
NAME = "gated_mix__mha_block__mixer_gmlp__prompt"
ref = open(f"cdna_kernels/{NAME}.s.ref").read()
head = ref[:ref.index("; @launch")]
head += f"; @launch kernel=gm_k1_kernel grid=({k1.K1_WGS},1,1) block=(512,1,1) lds={k1.K1_LDS}\n"
head += f"; @launch kernel=gm_k2_kernel grid=({k2.K2_WGS},1,1) block=(512,1,1) lds={k2.K2_LDS}\n"
head += f"; @launch kernel=gm_k3_kernel grid=({k3.K3_WGS},1,1) block=(512,1,1) lds={k3.K3_LDS}\n"
head += '.amdgcn_target "amdgcn-amd-amdhsa--gfx950"\n'
txt = head + k1.k1("gm_k1_kernel") + k2.k2("gm_k2_kernel") + k3.k3("gm_k3_kernel")
out = sys.argv[1] if len(sys.argv) > 1 else f"cdna_kernels/{NAME}.s"
open(out, "w").write(txt)
print("wrote", out, len(txt))
```

```python
import struct
import math
from dsl import *

S = 2048
D = 512
FH = 896
MB = 1 << 20
WS_QF = 0
WS_KF = 2 * MB
WS_VF = 4 * MB
WS_Z1F = 6 * MB
WS_Z2F = 10 * MB
WS_AF = 14 * MB
WS_G = 20 * MB
WS_ST = 20 * MB + 65536
WS_BYTES = 268435456

LOG2E = 1.4426950408889634
QSCALE = 0.25 * LOG2E


def f32(x):
    return "0x%08x" % struct.unpack("<I", struct.pack("<f", x))[0]


def MFMA(d, a, b, c):
    cc = c if isinstance(c, str) else v(c, 16)
    return I("v_mfma_f32_32x32x16_bf16", v(d, 16), v(a, 4), v(b, 4), cc)


def srd(p, dst, ptr, nbytes):
    p("s_mov_b32", s(dst), s(ptr))
    p("s_mov_b32", s(dst + 1), s(ptr + 1))
    p("s_mov_b32", s(dst + 2), hex(nbytes))
    p("s_mov_b32", s(dst + 3), "0x00020000")


KA_X, KA_WQKV, KA_WO, KA_BX, KA_WIN, KA_WSP, KA_BSP, KA_WOUT = 16, 18, 20, 22, 24, 26, 28, 30
KA_GW, KA_OUT, KA_DBG, KA_WS = 32, 34, 36, 38


def load_kernargs(p):
    p("s_load_dwordx16", s(16, 16), s(0, 2), "0x0")
    p("s_load_dwordx8", s(32, 8), s(0, 2), "0x40")


def dma(p_or_none, voff, srd_, soff, m0val, tok, m0_base=None, imm=0, mods=""):
    out = []
    if m0_base is None:
        out.append(I("s_mov_b32", "m0", hex(m0val)))
    else:
        out.append(I("s_add_u32", "m0", s(m0_base), hex(m0val)))
    m = "offen lds" if not imm else f"offen offset:{imm} lds"
    if mods:
        m = m.replace(" lds", " " + mods + " lds")
    out.append(I("buffer_load_dwordx4", v(voff), s(srd_, 4), soff if isinstance(soff, str) else s(soff), mods=m, tok_w=tok))
    return out


def kernel_text(name, body, vgprs=256, sgprs=102):
    return f""".text
.globl {name}
.p2align 8
.type {name},@function
{name}:
{body}
.section .rodata,"a"
.p2align 6
.amdhsa_kernel {name}
  .amdhsa_next_free_vgpr {vgprs}
  .amdhsa_next_free_sgpr {sgprs}
  .amdhsa_accum_offset {vgprs}
  .amdhsa_group_segment_fixed_size 0
  .amdhsa_kernarg_size 96
  .amdhsa_user_sgpr_count 2
  .amdhsa_user_sgpr_kernarg_segment_ptr 1
  .amdhsa_system_sgpr_workgroup_id_x 1
.end_amdhsa_kernel
"""


import os
CFG = {k[4:]: v_ for k, v_ in os.environ.items() if k.startswith("CFG_")}
TS_ON = CFG.get("TS", "0") == "1"
WS_TS = 32 * MB


class Stamps:
    def __init__(self, kidx, base=88, n=6):
        self.k = kidx
        self.base = base
        self.n = n

    def ts(self, i, real=False):
        if not TS_ON:
            return []
        assert i < self.n
        return [I("s_memrealtime" if real else "s_memtime", s(self.base + 2 * i, 2))]

    def flush(self, srd_ws, s_wave, vt0, vt1, st0):
        if not TS_ON:
            return []
        out = []
        out.append(I("s_lshl_b32", s(st0), s(2), 3))
        out.append(I("s_add_u32", s(st0), s(st0), s(s_wave)))
        out.append(I("s_lshl_b32", s(st0), s(st0), 7))
        out.append(I("s_add_u32", s(st0), s(st0), hex(WS_TS + self.k * 512 * 8 * 128)))
        out.append(I("v_mov_b32", v(vt0), 0))
        out.append(I("v_and_b32", v(vt1), 63, v(0)))
        out.append(I("v_lshlrev_b32", v(vt1), 2, v(vt1)))
        for i in range(2 * self.n):
            out.append(I("v_writelane_b32", v(vt0), s(self.base + i), i))
        out.append(I("s_getreg_b32", s(self.base), "hwreg(HW_REG_XCC_ID)"))
        out.append(I("v_writelane_b32", v(vt0), s(self.base), 31))
        out.append(I("s_mov_b64", "exec", "0xffffffff"))
        out.append(I("buffer_store_dword", v(vt0), v(vt1), s(srd_ws, 4), s(st0), mods="offen"))
        out.append(I("s_mov_b64", "exec", -1))
        return out


class Stamps2:
    def __init__(self, vts, st):
        self.v = vts
        self.s = st
        self.names = {}

    def ts(self, i, name=None, real=False):
        if not TS_ON:
            return []
        if name:
            self.names[i] = name
        return [I("s_memrealtime" if real else "s_memtime", s(self.s, 2)), I("v_writelane_b32", v(self.v), s(self.s), i)]

    def flush(self, srd_ws, s_wave, vt1, st0):
        if not TS_ON:
            return []
        out = self.ts(63, real=True)
        out.append(I("s_getreg_b32", s(self.s), "hwreg(HW_REG_XCC_ID)"))
        out.append(I("v_writelane_b32", v(self.v), s(self.s), 61))
        out.append(I("s_lshl_b32", s(st0), s(2), 3))
        out.append(I("s_add_u32", s(st0), s(st0), s(s_wave)))
        out.append(I("s_lshl_b32", s(st0), s(st0), 8))
        out.append(I("s_add_u32", s(st0), s(st0), hex(WS_TS)))
        out.append(I("v_and_b32", v(vt1), 63, v(0)))
        out.append(I("v_lshlrev_b32", v(vt1), 2, v(vt1)))
        out.append(I("buffer_store_dword", v(self.v), v(vt1), s(srd_ws, 4), s(st0), mods="offen"))
        return out
```

```python
from common import *
from k1 import LdsAddr, gelu_stream, cvt_stream, GC1, GC2

FK_WGS = 256
FK_LDS = 163840
WS_FL = 21 * MB
FL_KV, FL_Q, FL_Z2, FL_Z1, FL_U, FL_O = 0, 4096, 8192, 16384, 20480, 24576
NPART = 20
SPIN = 40000

KVB = 65536
WRB = 98304
SCR = 147456
XCH = 57344


def fk(name):
    p = Prog()
    P0 = int(CFG.get("P0", 5))
    LEAD = int(CFG.get("LEAD", 1))
    N_ISSUE = int(CFG.get("NISS", 1))
    N_CHECK = int(CFG.get("NCHK", 3))
    N_FLAG = int(CFG.get("NFLG", 2))
    SAUX1, SAUX2, SAUX3 = 4, 8, 12
    SX, SW0, SWIN, SWS, SDBG, SWSP = 40, 44, 48, 52, 56, 60
    sa = Alloc(64, 100)
    sW, sRT, sCT, sRB, sSLOT, sHEAD, sQB, sT0, sT1, sT2, sT3 = [sa() for _ in range(11)]
    sXoff, sW0c, sP64, sR3c, sR4c, sSo, sTT, sW1k, sW2k = [sa() for _ in range(9)]
    sO0, sO1, sO2, sO3 = [sa() for _ in range(4)]
    sCnt, sScale, sQKb, sMkv, sZa, sZb, sSoW, sSoKV, sSoZ, sIt = [sa() for _ in range(10)]
    sVM = sa(2)
    assert sO0 % 2 == 0 and sO2 % 2 == 0
    sFT = 3
    vL, vL16, vFl, vTS, vA, vB, vC = 1, 2, 3, 4, 5, 6, 7
    vPoll, vPa = 30, 31
    T = Stamps2(vTS, 100)
    vXs0, vXs1, vW0, vWin = 8, 9, 10, 11
    vXr = [12, 13, 14, 15]
    vWr, vC2 = 16, 17
    vT = list(range(18, 26))
    vS1, vS2, vR = 26, 27, 28
    vDKV = 29
    WF = 32
    PK = 56
    ACC = [64, 80, 96, 112]
    XF = 128
    vK, vV, vD0, vD1 = 8, 9, 10, 11
    vWs = [12, 13, 14, 15]
    vZ = [16, 17]
    vBs, vNMR, vWo = 18, 19, 20
    G = [64, 80]
    Q = [112, 116]
    KFr = [120, 124]
    Sb = [128, 144]
    O = [160, 176]
    NM = 192
    VFr = [208, 216]
    P = 224
    WFs = [[232, 236], [240, 244]]
    ZFr = [248, 252]
    STT = 32
    TMP = 96

    def wave0(block, tag):
        lab = p.newlabel(tag)
        return [I("s_cmp_lg_u32", s(sW), 0), I("s_cbranch_scc1", lab)] + block + [Ins("label", lab)]

    def set_flag(mask):
        return wave0([I("v_mov_b32", v(vPoll), 1), I("s_mov_b64", "exec", hex(mask)),
                      I("buffer_store_dword", v(vPoll), v(vFl), s(SWS, 4), "0", mods="offen sc1"),
                      I("s_mov_b64", "exec", -1)], "FL")

    def poll(srd_, want, first_issued=False):
        lp = p.newlabel("PL")
        lc = p.newlabel("PC")
        ld = p.newlabel("PD")
        out = [I("s_mov_b32", s(sCnt), 0)]
        if first_issued:
            out.append(I("s_branch", lc))
        out += [Ins("label", lp),
                I("buffer_load_dword", v(vPoll), v(vPa), s(srd_, 4), "0", mods="offen sc1"),
                Ins("label", lc),
                I("v_cmp_ne_u32", "vcc", want, v(vPoll)),
                I("s_cmp_eq_u64", "vcc", 0),
                I("s_cbranch_scc1", ld),
                I("s_sleep", 1),
                I("s_add_u32", s(sCnt), s(sCnt), 1),
                I("s_cmp_lt_u32", s(sCnt), SPIN),
                I("s_cbranch_scc1", lp),
                Ins("label", ld)]
        return out

    p("s_cmp_ge_u32", s(2), FK_WGS)
    p("s_cbranch_scc1", "FK_END")
    load_kernargs(p)
    if TS_ON:
        p("v_mov_b32", v(vTS), 0)
    p.add(T.ts(62, real=True) + T.ts(0, "start"))
    p("v_and_b32", v(vL), 63, v(0))
    p("v_mov_b32", v(vPa), 0)
    p("v_lshrrev_b32", v(vA), 6, v(0))
    p("v_readfirstlane_b32", s(sW), v(vA))
    p("s_and_b32", s(sT0), s(2), 7)
    p("s_lshr_b32", s(sT1), s(2), 3)
    p("s_and_b32", s(sT2), s(sT1), 3)
    p("s_lshr_b32", s(sQB), s(sT1), 2)
    p("s_lshr_b32", s(sRB), s(sT0), 1)
    p("s_lshl_b32", s(sRB), s(sRB), 2)
    p("s_add_u32", s(sRB), s(sRB), s(sT2))
    p("s_and_b32", s(sSLOT), s(sT0), 1)
    p("s_lshl_b32", s(sSLOT), s(sSLOT), 3)
    p("s_add_u32", s(sSLOT), s(sSLOT), s(sQB))
    p("s_lshl_b32", s(sHEAD), s(sT0), 2)
    p("s_add_u32", s(sHEAD), s(sHEAD), s(sT2))
    p("s_and_b32", s(sRT), s(sW), 3)
    p("s_lshr_b32", s(sCT), s(sW), 2)
    p("s_lshl_b32", s(sXoff), s(sRB), 17)
    p("s_lshl_b32", s(sW1k), s(sW), 10)
    p("s_lshl_b32", s(sW2k), s(sW), 11)
    p("s_lshl_b32", s(sW0c), s(sSLOT), 8)
    p("s_sub_u32", s(sT0), s(sW0c), 3072 - 1792)
    p("s_cmp_lt_u32", s(sSLOT), 12)
    p("s_cselect_b32", s(sW0c), s(sW0c), s(sT0))
    p("s_mov_b32", s(sT3), 3584)
    p("s_cmov_b32", s(sT3), 3072)
    p("s_lshl_b32", s(sP64), s(sT3), 6)
    p("v_lshrrev_b32", v(vA), 3, v(vL))
    p("v_lshrrev_b32", v(vB), 4, v(vL))
    p("v_and_b32", v(vT[0]), 7, v(vL))
    p("v_xor_b32", v(vT[1]), v(vT[0]), v(vB))
    p("v_lshlrev_b32", v(vT[1]), 4, v(vT[1]))
    p("s_lshl_b32", s(sT0), s(sW), 4)
    p("v_add_u32", v(vT[2]), s(sT0), v(vA))
    p("v_lshlrev_b32", v(vT[2]), 10, v(vT[2]))
    p("v_add_u32", v(vXs0), v(vT[2]), v(vT[1]))
    p("v_xor_b32", v(vXs1), 64, v(vXs0))
    p("v_add_u32", v(vXs1), 8192, v(vXs1))
    p("v_and_b32", v(vT[1]), 1, v(vB))
    p("v_lshlrev_b32", v(vT[1]), 2, v(vT[1]))
    p("v_xor_b32", v(vT[1]), v(vT[0]), v(vT[1]))
    p("v_lshlrev_b32", v(vT[1]), 4, v(vT[1]))
    p("s_lshl_b32", s(sT0), s(sW), 3)
    p("v_add_u32", v(vT[2]), s(sT0), v(vA))
    p("v_mul_u32_u24", v(vW0), s(sT3), v(vT[2]))
    p("v_add_u32", v(vW0), v(vW0), v(vT[1]))
    p("v_mul_u32_u24", v(vWin), 3584, v(vT[2]))
    p("v_add_u32", v(vWin), v(vWin), v(vT[1]))
    srd(p, SX, KA_X, S * D * 2)
    p("s_cmp_lt_u32", s(sSLOT), 12)
    p("s_cselect_b32", s(SW0), s(KA_WQKV), s(KA_WIN))
    p("s_cselect_b32", s(SW0 + 1), s(KA_WQKV + 1), s(KA_WIN + 1))
    p("s_mov_b32", s(sT0), hex(D * 1792 * 2))
    p("s_cselect_b32", s(SW0 + 2), hex(D * 1536 * 2), s(sT0))
    p("s_mov_b32", s(SW0 + 3), "0x00020000")

    SLOT = 32768

    def dma_step(st):
        out = []
        base = (st % 5) * SLOT
        tok = f"st{st}"
        if st < 8:
            out.append(I("s_add_u32", s(sSo), s(sXoff), st * 128))
            out += dma(None, vXs0, SX, sSo, base, tok, m0_base=sW2k)
            out += dma(None, vW0, SW0, sW0c, base + 16384, tok, m0_base=sW1k)
            out += dma(None, vXs1, SX, sSo, base + 1024, tok, m0_base=sW2k)
            out += dma(None, vW0, SW0, sW0c, base + 16384 + 8192 - 128, tok, m0_base=sW1k, imm=128)
            out.append(I("s_add_u32", s(sW0c), s(sW0c), s(sP64)))
        else:
            sc = sR3c if st < 10 else sR4c
            kb = (st % 2) * 256
            for i in range(4):
                out.append(I("s_add_u32", s(sSo), s(sc), (kb + 64 * i) * 3584))
                out += dma(None, vWin, SWIN, sSo, base + i * 8192, tok, m0_base=sW1k)
        return out

    p.add(dma_step(0))
    p.add(dma_step(1))
    srd(p, SWIN, KA_WIN, D * 1792 * 2)
    srd(p, SWS, KA_WS, WS_BYTES)
    srd(p, SDBG, KA_DBG, 256)
    srd(p, SWSP, KA_WSP, S * S * 2)
    srd(p, SAUX3, KA_GW, 1024)
    p("s_lshl_b32", s(sTT), s(sRB), 2)
    p("s_add_u32", s(sTT), s(sTT), s(sRT))
    p("s_lshl_b32", s(sT0), s(sSLOT), 7)
    p("s_add_u32", s(sT1), s(sT0), 1792 + 1024)
    p("s_sub_u32", s(sT2), s(sT0), 768)
    p("s_cmp_lt_u32", s(sSLOT), 6)
    p("s_cselect_b32", s(sR3c), s(sT1), s(sT2))
    p("s_add_u32", s(sR4c), s(sT0), 512)
    p("v_lshlrev_b32", v(vL16), 4, v(vL))
    p("v_lshlrev_b32", v(vFl), 7, v(vL))
    p("s_lshl_b32", s(sT3), s(sRB), 2)
    p("s_and_b32", s(sT0), s(sSLOT), 3)
    p("s_lshl_b32", s(sT0), s(sT0), 10)
    p("s_add_u32", s(sT0), s(sT0), s(sT3))
    p("s_cmp_lt_u32", s(sSLOT), 8)
    p("s_mov_b32", s(sT1), hex(WS_FL + FL_KV + 64))
    p("s_cmov_b32", s(sT1), hex(WS_FL + FL_KV))
    p("s_cmp_lt_u32", s(sSLOT), 4)
    p("s_cselect_b32", s(sT1), hex(WS_FL + FL_Q), s(sT1))
    p("s_add_u32", s(sT0), s(sT0), s(sT1))
    p("s_mov_b64", "exec", "0xff")
    p("v_add_u32", v(vFl), s(sT0), v(vFl))
    p("s_lshr_b32", s(sT0), s(sSLOT), 1)
    p("s_add_u32", s(sT0), s(sT0), 4)
    p("s_lshl_b32", s(sT0), s(sT0), 10)
    p("s_and_b32", s(sT1), s(sSLOT), 1)
    p("s_lshl_b32", s(sT1), s(sT1), 6)
    p("s_add_u32", s(sT0), s(sT0), s(sT1))
    p("s_sub_u32", s(sT1), s(sSLOT), 12)
    p("s_lshl_b32", s(sT1), s(sT1), 10)
    p("s_cmp_lt_u32", s(sSLOT), 12)
    p("s_cselect_b32", s(sT0), s(sT0), s(sT1))
    p("s_add_u32", s(sT0), s(sT0), s(sT3))
    p("s_add_u32", s(sT0), s(sT0), hex(WS_FL + FL_Z2 - 1024))
    p("s_mov_b64", "exec", "0xff00")
    p("v_add_u32", v(vFl), s(sT0), v(vFl))
    p("s_lshl_b32", s(sT0), s(sRB), 7)
    p("s_lshl_b32", s(sT1), s(sSLOT), 2)
    p("s_add_u32", s(sT0), s(sT0), s(sT1))
    p("s_add_u32", s(sT0), s(sT0), hex(WS_FL + FL_Z1))
    p("s_mov_b64", "exec", "0x10000")
    p("v_mov_b32", v(vFl), s(sT0))
    p("s_lshl_b32", s(sT0), s(sHEAD), 7)
    p("s_lshl_b32", s(sT1), s(sQB), 2)
    p("s_add_u32", s(sT0), s(sT0), s(sT1))
    p("s_add_u32", s(sT0), s(sT0), hex(WS_FL + FL_U))
    p("s_mov_b64", "exec", "0x20000")
    p("v_mov_b32", v(vFl), s(sT0))
    p("s_lshl_b32", s(sT0), s(sQB), 9)
    p("s_lshl_b32", s(sT1), s(sHEAD), 2)
    p("s_add_u32", s(sT0), s(sT0), s(sT1))
    p("s_add_u32", s(sT0), s(sT0), hex(WS_FL + FL_O - 18 * 128))
    p("s_mov_b64", "exec", "0x3c0000")
    p("v_add_u32", v(vFl), s(sT0), v(vFl))
    p("s_mov_b64", "exec", -1)
    p("s_cmp_lt_u32", s(sSLOT), 12)
    p("s_mov_b32", s(sO0), "0x3fff00")
    p("s_cmov_b32", s(sO0), "0x3f00ff")
    p("s_cmp_lt_u32", s(sSLOT), 6)
    p("s_cselect_b32", s(sO0), "0x3fffff", s(sO0))
    p("s_mov_b32", s(sO1), 0)
    p.add(wave0([I("v_mov_b32", v(vPoll), 0), I("s_mov_b64", "exec", s(sO0, 2)),
                 I("buffer_store_dword", v(vPoll), v(vFl), s(SWS, 4), "0", mods="offen sc1", tok_w="rst"),
                 I("s_mov_b64", "exec", -1)], "RS"))
    sST = sO3
    p("s_lshl_b32", s(sT0), s(sSLOT), 1)
    p("s_add_u32", s(sT1), s(sT0), 8)
    p("s_sub_u32", s(sT0), s(sT0), 24)
    p("s_cmp_lt_u32", s(sSLOT), 12)
    p("s_cselect_b32", s(sT0), s(sT1), s(sT0))
    p("s_add_u32", s(sT0), s(sT0), s(sCT))
    p("s_mul_i32", s(sT1), s(sTT), NPART)
    p("s_add_u32", s(sT0), s(sT0), s(sT1))
    p("s_lshl_b32", s(sT0), s(sT0), 8)
    p("s_add_u32", s(sST), s(sT0), hex(WS_ST))
    p("v_lshlrev_b32", v(vA), 2, v(vL))
    p("v_mov_b32", v(vB), -1)
    p("s_sub_u32", s(sT0), s(sSLOT), 6)
    p("s_cmp_lt_u32", s(sT0), 6)
    p("s_cbranch_scc1", "FK_NOSENT")
    p("buffer_store_dword", v(vB), v(vA), s(SWS, 4), s(sST), mods="offen sc1", tok_w="rst")
    p.label("FK_NOSENT")
    p.add(dma_step(2))
    p("v_and_b32", v(vA), 31, v(vL))
    p("v_lshrrev_b32", v(vB), 5, v(vL))
    p("v_bfe_u32", v(vT[0]), v(vA), 1, 3)
    p("v_xor_b32", v(vT[0]), v(vT[0]), v(vB))
    p("v_lshlrev_b32", v(vT[0]), 4, v(vT[0]))
    p("v_lshlrev_b32", v(vT[1]), 7, v(vA))
    p("s_lshl_b32", s(sT0), s(sRT), 12)
    p("v_add3_u32", v(vXr[0]), v(vT[0]), v(vT[1]), s(sT0))
    for ks in range(1, 4):
        p("v_xor_b32", v(vXr[ks]), 32 * ks, v(vXr[0]))
    p("v_bfe_u32", v(vT[0]), v(vL), 2, 2)
    p("v_lshl_add_u32", v(vT[1]), v(vB), 3, v(vT[0]))
    p("v_lshlrev_b32", v(vT[1]), 7, v(vT[1]))
    p("v_lshrrev_b32", v(vT[0]), 1, v(vT[0]))
    p("v_xor_b32", v(vT[0]), s(sCT), v(vT[0]))
    p("v_lshl_add_u32", v(vT[1]), v(vT[0]), 6, v(vT[1]))
    p("v_bfe_u32", v(vT[0]), v(vL), 4, 1)
    p("v_lshl_add_u32", v(vT[1]), v(vT[0]), 5, v(vT[1]))
    p("v_and_b32", v(vT[0]), 3, v(vL))
    p("v_lshl_add_u32", v(vWr), v(vT[0]), 3, v(vT[1]))
    p("v_mov_b32", v(vC2), f32(GC2))
    p("s_lshl_b32", s(sT0), s(sCT), 21)
    p("s_add_u32", s(sT0), s(sT0), hex(WS_KF))
    p("s_lshl_b32", s(sT1), s(sHEAD), 16)
    p("s_add_u32", s(sT0), s(sT0), s(sT1))
    p("s_bfe_u32", s(sT1), s(sW), "0x10001")
    p("s_lshl_b32", s(sT1), s(sT1), 15)
    p("s_add_u32", s(sT0), s(sT0), s(sT1))
    p("s_and_b32", s(sT1), s(sW), 1)
    p("s_lshl_b32", s(sT1), s(sT1), 10)
    p("s_add_u32", s(sT0), s(sT0), s(sT1))
    p("v_add_u32", v(vDKV), s(sT0), v(vL16))
    p("s_add_u32", s(sMkv), s(sW1k), KVB)
    p("s_mov_b32", s(sSoKV), 0)

    def wread(dst, off, aWx):
        out = []
        pre, imm = aWx.at(off, 512)
        out += pre
        out.append(I("ds_read_b64_tr_b16", v(dst, 2), v(aWx.reg), mods=f"offset:{imm}"))
        out.append(I("ds_read_b64_tr_b16", v(dst + 2, 2), v(aWx.reg), mods=f"offset:{imm + 512}"))
        return out

    def if_r4(block, other, tag):
        l1 = p.newlabel(tag)
        l2 = p.newlabel(tag)
        out = [I("s_sub_u32", s(sT0), s(sSLOT), 6), I("s_cmp_lt_u32", s(sT0), 4), I("s_cbranch_scc0", l1)] + block
        if other:
            out += [I("s_branch", l2), Ins("label", l1)] + other + [Ins("label", l2)]
        else:
            out += [Ins("label", l1)]
        return out

    def group0(swapped):
        aX = [LdsAddr(r) for r in vXr]
        aW = LdsAddr(vWr)

        def reads0(kap):
            st, ks = divmod(kap, 4)
            base = (st % 5) * SLOT
            out = []
            pre, imm = aX[ks].at(base)
            out += pre
            out.append(I("ds_read_b128", v(XF + 4 * kap, 4), v(vXr[ks]), mods=f"offset:{imm}"))
            for pr in range(2):
                out += wread(WF + (pr * 3 + kap % 3) * 4, base + 16384 + pr * 8192 + ks * 2048, aW)
            return out

        def mf0(kap):
            out = []
            for pr in range(2):
                w_, x_ = WF + (pr * 3 + kap % 3) * 4, XF + 4 * kap
                c = "0" if kap == 0 else ACC[pr]
                out.append(MFMA(ACC[pr], x_, w_, c) if swapped else MFMA(ACC[pr], w_, x_, c))
            return out

        RA = 2
        for kap in range(-RA, 32):
            kr = kap + RA
            if kr < 32:
                if kr % 4 == 0:
                    st = kr // 4
                    toks = [f"st{st}"] + (["rst"] if st == 1 else [])
                    p.add([need(*toks), I("s_waitcnt", "lgkmcnt(0)"), I("s_barrier")])
                    if st == 0:
                        p.add(T.ts(1, "st0"))
                    p.add(reads0(kr))
                    if st + 3 < 10:
                        p.add(dma_step(st + 3))
                    elif st + 3 == 10:
                        p.add(if_r4(dma_step(10), None, "R4A"))
                    if st == 1:
                        p.add(wave0([I("v_mov_b32", v(vPoll), 1), I("v_mov_b32", v(vPa), 0), I("s_mov_b64", "exec", 1),
                                     I("buffer_store_byte", v(vPoll), v(vPa), s(SDBG, 4), s(2), mods="offen sc1"),
                                     I("s_mov_b64", "exec", -1)], "EP"))
                else:
                    p.add(reads0(kr))
            if kap >= 0:
                p.add(mf0(kap))
        p.add(T.ts(2, "g0end"))
        return aW

    def z1_epi(a, s_hu_expr):
        out = list(s_hu_expr)
        out.append(I("s_mul_i32", s(sO1), s(sTT), 28))
        out.append(I("s_add_u32", s(sO0), s(sO0), s(sO1)))
        out.append(I("s_lshl_b32", s(sO0), s(sO0), 11))
        out.append(I("s_add_u32", s(sO0), s(sO0), hex(WS_Z1F)))
        out += gelu_stream([a + i for i in range(16)], vT, vC2)
        out += cvt_stream(PK, a)
        for m in range(2):
            out.append(I("buffer_store_dwordx4", v(PK + 4 * m, 4), v(vL16), s(SWS, 4), s(sO0),
                         mods=f"offen offset:{1024 * m} sc1", tok_w="z1s"))
        return out

    def ft_expr(delta):
        return [I("s_lshl_b32", s(sO0), s(sSLOT), 1), I("s_add_u32", s(sO0), s(sO0), s(sCT)),
                I("s_add_i32", s(sO0), s(sO0), 2 * delta)]

    def z2_part1(accs):
        out = []
        for a in accs:
            out += gelu_stream([a + i for i in range(16)], vT, vC2)
        regs = [a + i for a in accs for i in range(16)]
        n = len(regs)
        out.append(I("v_add_f32", v(vS1), v(regs[0]), v(regs[1])))
        out.append(I("v_mul_f32", v(vS2), v(regs[0]), v(regs[0])))
        out.append(I("v_add_f32", v(vA), v(regs[2]), v(regs[3])))
        out.append(I("v_mul_f32", v(vB), v(regs[1]), v(regs[1])))
        for i in range(4, n, 2):
            out.append(I("v_add_f32", v(vS1), v(vS1), v(regs[i])))
            out.append(I("v_add_f32", v(vA), v(vA), v(regs[i + 1])))
        for i in range(2, n, 2):
            out.append(I("v_fmac_f32", v(vS2), v(regs[i]), v(regs[i])))
            out.append(I("v_fmac_f32", v(vB), v(regs[i + 1]), v(regs[i + 1])))
        out.append(I("v_add_f32", v(vS1), v(vS1), v(vA)))
        out.append(I("v_add_f32", v(vS2), v(vS2), v(vB)))
        out.append(I("v_permlane32_swap_b32", v(vS1), v(vS2)))
        out.append(I("v_add_f32", v(vS1), v(vS1), v(vS2)))
        out.append(I("v_lshlrev_b32", v(vA), 2, v(vL)))
        out.append(I("buffer_store_dword", v(vS1), v(vA), s(SWS, 4), s(sST), mods="offen sc1"))
        return out

    def head_off(base_s):
        out = []
        out.append(I("s_and_b32", s(sO0), s(sSLOT), 3))
        out.append(I("s_lshl_b32", s(sO0), s(sO0), 2))
        out.append(I("s_add_u32", s(sO0), s(sO0), s(sCT)))
        out.append(I("s_lshl_b32", s(sO0), s(sO0), 17))
        out.append(I("s_lshl_b32", s(sO1), s(sTT), 10))
        out.append(I("s_add_u32", s(sO0), s(sO0), s(sO1)))
        out.append(I("s_add_u32", s(sQKb), s(sO0), base_s))
        return out

    def qk_epi():
        out = [I("s_cmp_lt_u32", s(sSLOT), 4), I("s_cselect_b32", s(sScale), f32(QSCALE), "1.0"),
               I("s_cselect_b32", s(sQKb), hex(WS_QF), hex(WS_KF))] + head_off(s(sQKb))
        for pr in range(2):
            a = ACC[pr]
            pk = ACC[3] + 8 * pr
            for i in range(16):
                out.append(I("v_mul_f32", v(a + i), s(sScale), v(a + i)))
            out += cvt_stream(pk, a)
            for m in range(2):
                out.append(I("s_add_u32", s(sSo), s(sQKb), hex((pr * 4 + m) * 65536)))
                out.append(I("buffer_store_dwordx4", v(pk + 4 * m, 4), v(vL16), s(SWS, 4), s(sSo), mods="offen sc1", tok_w="qkv"))
        return out

    def v_epi():
        out = []
        out.append(I("v_bfe_u32", v(vA), v(vL), 4, 1))
        out.append(I("v_lshlrev_b32", v(vA), 16, v(vA)))
        out.append(I("v_lshrrev_b32", v(vB), 5, v(vL)))
        out.append(I("v_lshl_add_u32", v(vA), v(vB), 8, v(vA)))
        out.append(I("v_and_b32", v(vB), 15, v(vL)))
        out.append(I("v_lshl_add_u32", v(vR), v(vB), 4, v(vA)))
        out += head_off(hex(WS_VF))
        for pr in range(2):
            pk = ACC[3] + 8 * pr
            out += cvt_stream(pk, ACC[pr])
            out.append(I("s_add_u32", s(sSo), s(sQKb), hex(pr * 4 * 65536)))
            for m in range(2):
                out.append(I("buffer_store_dwordx4", v(pk + 4 * m, 4), v(vR), s(SWS, 4), s(sSo),
                             mods=f"offen offset:{512 * m} sc1", tok_w="qkv"))
        return out

    def round_(aW, st0, a, at_bar):
        RA1 = 4
        main = []
        marks = {}
        for q in range(-RA1, 32):
            qr = q + RA1
            if qr < 32:
                st = st0 + qr // 16
                if qr % 16 == 0:
                    pre, post = at_bar[qr // 16]
                    marks[("pre", qr // 16)] = len(main)
                    main += pre + [need(f"st{st}"), I("s_waitcnt", "lgkmcnt(0)"), I("s_barrier")] + post
                    marks[("post", qr // 16)] = len(main)
                main += wread(WF + (qr % 6) * 4, (st % 5) * SLOT + (qr % 16) * 2048, aW)
            if q >= 0:
                main.append(MFMA(a, WF + (q % 6) * 4, XF + 4 * q, "0" if q == 0 else a))
        return main, marks

    def weave2(main, marks, side):
        a0, a1 = marks[("post", 0)] + 8, marks[("pre", 1)]
        b0, b1 = marks[("post", 1)], len(main) - 2
        n1 = len(side) * (a1 - a0) // ((a1 - a0) + (b1 - b0))
        main = weave(main, side[n1:], b0, b1)
        main = weave(main, side[:n1], a0, a1)
        return main

    def epoch_issue():
        return wave0([I("v_lshlrev_b32", v(vPa), 2, v(vL)),
                      I("buffer_load_dword", v(vPoll), v(vPa), s(SDBG, 4), "0", mods="offen sc1")], "EI")

    def entry_poll():
        blk = poll(SDBG, "0x01010101", first_issued=True)
        blk += [I("s_lshl_b32", s(sT0), s(sHEAD), 7),
                I("s_add_u32", s(sT0), s(sT0), hex(WS_FL + FL_KV)),
                I("v_lshlrev_b32", v(vPa), 2, v(vL)),
                I("v_add_u32", v(vPa), s(sT0), v(vPa)),
                I("s_lshl_b32", s(sT1), s(sQB), 3),
                I("s_add_u32", s(sT0), s(sT0), s(sT1)),
                I("s_add_u32", s(sT0), s(sT0), FL_Q - FL_KV),
                I("s_mov_b32", "exec_lo", 0),
                I("v_and_b32", v(vPa), 4, v(vPa)),
                I("v_add_u32", v(vPa), s(sT0), v(vPa)),
                I("s_mov_b32", "exec_lo", -1)]
        blk += poll(SWS, 1)
        return wave0(blk, "EN")

    def kv_dma(par, tok):
        out = dma(None, vDKV, SWS, sSoKV, par * 8192, tok, m0_base=sMkv, mods="sc1")
        out.append(I("s_add_u32", s(sSoKV), s(sSoKV), 2048))
        return out

    def kv_toggle():
        return [I("s_xor_b32", s(sMkv), s(sMkv), 16384)]

    sTA = sQKb

    def kv_prefetch():
        out = kv_dma(0, "kvf")
        out.append(I("s_lshl_b32", s(sTA), s(sQB), 3))
        out.append(I("s_lshl_b32", s(sT0), s(sRT), 1))
        out.append(I("s_add_u32", s(sTA), s(sTA), s(sT0)))
        out.append(I("s_add_u32", s(sTA), s(sTA), s(sCT)))
        out.append(I("s_lshl_b32", s(sT0), s(sHEAD), 16))
        out.append(I("s_lshl_b32", s(sT1), s(sTA), 10))
        out.append(I("s_add_u32", s(sT0), s(sT0), s(sT1)))
        out.append(I("s_xor_b32", s(sT1), s(sT0), 1024))
        out.append(I("buffer_load_dwordx4", v(Q[0], 4), v(vL16), s(SWS, 4), s(sT0), mods="offen sc1"))
        out.append(I("buffer_load_dwordx4", v(Q[1], 4), v(vL16), s(SWS, 4), s(sT1), mods="offen sc1"))
        out += kv_dma(1, "kv1")
        out += kv_toggle()
        out += kv_dma(0, "kv0")
        return out

    assert WS_QF == 0
    p("s_sub_u32", s(sT0), s(sSLOT), 8)
    p("s_cmp_lt_u32", s(sT0), 4)
    p("s_cbranch_scc0", "FK_G0N")
    aWs = group0(True)
    p.add(v_epi())
    p("s_branch", "FK_R3P")
    p.label("FK_G0N")
    aW = group0(False)
    assert aW.bias == aWs.bias
    p("s_cmp_ge_u32", s(sSLOT), 12)
    p("s_cbranch_scc1", "FK_R3Z")
    p.add(qk_epi())
    p.label("FK_R3P")
    gate_dma = dma(None, vL16, SAUX3, "0", 0, "gw", m0_base=sW1k)
    aW3 = aW.clone()
    main, marks = round_(aW3, 8, ACC[0], [([], if_r4(dma_step(11), gate_dma, "R4B")),
                                          ([need("qkv")], set_flag(0xff) + epoch_issue())])
    p.add(main)
    p.add(T.ts(3, "r3end"))
    p("s_cmp_lt_u32", s(sSLOT), 6)
    p("s_cbranch_scc1", "FK_E3Z2")
    p("s_cmp_lt_u32", s(sSLOT), 10)
    p("s_cbranch_scc1", "FK_R4")
    p.add(z1_epi(ACC[0], ft_expr(-6)))
    p("s_cmp_lg_u32", s(sSLOT), 10)
    p("s_cbranch_scc1", "FK_ENTRY_A")
    p("s_cmp_lg_u32", s(sCT), 0)
    p("s_cbranch_scc1", "FK_ENTRY_A")
    p("v_lshrrev_b32", v(vA), 5, v(vL))
    p("v_lshlrev_b32", v(vA), 4, v(vA))
    p("v_add_u32", v(vA), s(sW1k), v(vA))
    p.add(need("gw"))
    GA = ACC[1]
    for kap in range(-4, 32):
        if kap + 4 < 32:
            p("ds_read_b128", v(WF + 4 * ((kap + 4) % 6), 4), v(vA), mods=f"offset:{32 * (kap + 4)}")
        if kap >= 0:
            p.add(MFMA(GA, WF + 4 * (kap % 6), XF + 4 * kap, "0" if kap == 0 else GA))
    p("v_mul_f32", v(vA), f32(-LOG2E), v(GA))
    p("v_exp_f32", v(vA), v(vA))
    p("v_add_f32", v(vA), "1.0", v(vA))
    p("v_rcp_f32", v(vA), v(vA))
    p("v_and_b32", v(vB), 31, v(vL))
    p("v_lshlrev_b32", v(vB), 2, v(vB))
    p("s_lshl_b32", s(sO0), s(sTT), 7)
    p("s_add_u32", s(sO0), s(sO0), hex(WS_G))
    p("buffer_store_dword", v(vA), v(vB), s(SWS, 4), s(sO0), mods="offen sc1", tok_w="z1s")
    p("s_branch", "FK_ENTRY_A")
    p.label("FK_R4")
    aW4 = aW3.clone()
    main, marks = round_(aW4, 10, ACC[1], [([], []), (entry_poll(), kv_prefetch())])
    main = weave2(main, marks, z1_epi(ACC[0], ft_expr(-6)))
    p.add(main)
    p.add(z1_epi(ACC[1], ft_expr(4)))
    p("s_branch", "FK_ENTRY_B")
    p.label("FK_R3Z")
    aWz = aW.clone()
    main, marks = round_(aWz, 8, ACC[2], [([], []), ([], epoch_issue())])
    main = weave2(main, marks, z2_part1([ACC[0], ACC[1]]))
    p.add(main)
    p.add(T.ts(3, "r3end"))
    p.add(z1_epi(ACC[2], ft_expr(-6)))
    p("s_branch", "FK_ENTRY_A")
    p.label("FK_E3Z2")
    p.add(z2_part1([ACC[0]]))
    p.label("FK_ENTRY_A")
    p.add(T.ts(4, "entryA"))
    p.add(entry_poll())
    p("s_barrier")
    p.add(T.ts(5, "f1ok"))
    p.add(kv_prefetch())
    p.label("FK_ENTRY_B")
    sQP, sKH, sTB, sFB = sRT, sCT, sHEAD, sQB
    p("s_lshl_b32", s(sT0), s(sKH), 11)
    p("s_add_u32", s(sT0), s(sT0), KVB)
    p("v_add_u32", v(vK), s(sT0), v(vL16))
    p("v_lshrrev_b32", v(vA), 5, v(vL))
    p("v_and_b32", v(vB), 15, v(vL))
    p("v_lshlrev_b32", v(vB), 4, v(vB))
    p("v_lshl_add_u32", v(vB), v(vA), 8, v(vB))
    p("s_add_u32", s(sT0), s(sT0), 4096)
    p("v_add_u32", v(vV), s(sT0), v(vB))
    p("s_mov_b32", s(sVM), "0xffff")
    p("s_mov_b32", s(sVM + 1), "0xffff")
    p("v_and_b32", v(vB), 31, v(vL))
    p("v_bfe_u32", v(vC), v(vB), 1, 3)
    p("v_xor_b32", v(vC), v(vC), v(vA))
    p("v_lshlrev_b32", v(vC), 4, v(vC))
    p("v_lshlrev_b32", v(vB), 7, v(vB))
    p("s_lshl_b32", s(sT0), s(sKH), 13)
    p("s_add_u32", s(sT0), s(sT0), WRB)
    p("v_add3_u32", v(vWs[0]), v(vB), v(vC), s(sT0))
    for ks in range(1, 4):
        p("v_xor_b32", v(vWs[ks]), 32 * ks, v(vWs[0]))
    p("v_lshrrev_b32", v(vA), 3, v(vL))
    p("v_lshrrev_b32", v(vB), 4, v(vL))
    p("v_and_b32", v(vC), 7, v(vL))
    p("v_xor_b32", v(vC), v(vC), v(vB))
    p("v_lshlrev_b32", v(vC), 4, v(vC))
    p("s_lshl_b32", s(sT0), s(sTB), 6)
    p("s_lshl_b32", s(sT1), s(sQP), 4)
    p("s_lshl_b32", s(sT2), s(sKH), 5)
    p("s_xor_b32", s(sT1), s(sT1), s(sT2))
    p("s_add_u32", s(sT0), s(sT0), s(sT1))
    p("v_add_u32", v(vA), s(sT0), v(vA))
    p("v_lshlrev_b32", v(vA), 12, v(vA))
    p("s_lshl_b32", s(sT0), s(sKH), 11)
    p("v_add3_u32", v(vD0), v(vA), v(vC), s(sT0))
    p("v_xor_b32", v(vD1), 64, v(vD0))
    p("v_add_u32", v(vD1), 8 * 4096, v(vD1))
    p("s_mov_b32", s(sSoW), 0)
    p("s_lshl_b32", s(sZa), s(sW), 13)
    p("s_add_u32", s(sZb), s(sZa), 4096)
    p("v_add_u32", v(vZ[0]), s(sZa), v(vL16))
    p("v_add_u32", v(vZ[1]), s(sZb), v(vL16))
    p("s_lshl_b32", s(sT0), s(sFB), 2)
    p("s_add_u32", s(sT0), s(sT0), s(sQP))
    p("s_lshl_b32", s(sT0), s(sT0), 1)
    p("s_add_u32", s(sT0), s(sT0), s(sKH))
    p("s_lshl_b32", s(sT0), s(sT0), 16)
    p("s_add_u32", s(sSoZ), s(sT0), hex(WS_Z2F))
    p("v_and_b32", v(vA), 27, v(vL))
    p("v_cmp_eq_u32", "vcc", 16, v(vA))
    p("v_mov_b32", v(vB), "0x3f803f80")
    p("v_cndmask_b32", v(vB), 0, v(vB), "vcc")
    for i in range(16):
        p("v_mov_b32", v(VFr[0] + i), v(vB))
    for r in list(range(O[0], O[0] + 32)) + [P + 4, P + 5] + list(range(Sb[1] + 12, Sb[1] + 16)):
        p("v_mov_b32", v(r), 0)
    srd(p, SX, KA_BSP, S * 2)
    SBSP = SX
    srd(p, SAUX1, KA_WOUT, 896 * 512 * 2)
    srd(p, SAUX2, KA_WO, 512 * 512 * 2)
    srd(p, SAUX3, KA_OUT, S * D * 2)
    SWOUT, SWO, SOUT = SAUX1, SAUX2, SAUX3
    p("v_lshrrev_b32", v(vA), 3, v(vL))
    p("v_bfe_u32", v(vB), v(vL), 4, 1)
    p("v_lshlrev_b32", v(vB), 2, v(vB))
    p("v_and_b32", v(vC), 7, v(vL))
    p("v_xor_b32", v(vC), v(vC), v(vB))
    p("v_lshlrev_b32", v(vC), 4, v(vC))
    p("s_lshl_b32", s(sT0), s(sW), 3)
    p("v_add_u32", v(vA), s(sT0), v(vA))
    p("v_lshl_add_u32", v(vWo), v(vA), 10, v(vC))
    p("s_lshl_b32", s(sT0), s(sQB), 7)
    p("v_add_u32", v(vWo), s(sT0), v(vWo))
    p.add([need("kvf", "z1s"), I("s_barrier")])
    p.add(T.ts(6, "kv0"))
    p.add(set_flag(0x10000))

    E = lambda r: I("v_exp_f32", v(r), v(r))
    C = lambda d, r: I("v_cvt_pk_bf16_f32", v(d), v(r), v(r + 1))

    def kread(par, j):
        return [I("ds_read_b128", v(KFr[j], 4), v(vK), mods=f"offset:{par * 8192 + j * 1024}")]

    def vreads(par, j):
        return [I("s_mov_b64", "exec", s(sVM, 2))] + \
            [I("ds_read_b128", v(VFr[j] + 4 * m, 4), v(vV), mods=f"offset:{par * 8192 + j * 1024 + m * 512}") for m in range(2)] + \
            [I("s_mov_b64", "exec", -1)]

    def tog(r, x):
        return I("v_xor_b32", v(r), x, v(r))

    p("v_add_u32", v(vA), KVB, v(vL16))
    p("ds_read_b128", v(KFr[1], 4), v(vA))
    p.add(kread(0, 0))
    p.add(vreads(0, 0))
    if "NOWARM" not in CFG:
        p("s_lshl_b32", s(sT0), s(sTB), 18)
        p("s_lshl_b32", s(sT1), s(sQB), 15)
        p("s_add_u32", s(sT0), s(sT0), s(sT1))
        p("s_lshl_b32", s(sT1), s(sW), 12)
        p("s_add_u32", s(sT0), s(sT0), s(sT1))
        for i in range(4):
            p.add(dma(None, vL16, SWSP, sT0, SCR, "warm", m0_base=sW1k, imm=1024 * i))
        p("s_lshl_b32", s(sT0), s(2), 12)
        p("s_lshl_b32", s(sT1), s(sRT), 10)
        p("s_add_u32", s(sT0), s(sT0), s(sT1))
        p("s_cmp_lg_u32", s(sCT), 0)
        p("s_cbranch_scc1", "FK_WARM_O")
        p.add(dma(None, vL16, SWOUT, sT0, SCR, "warm", m0_base=sW1k))
        p("s_branch", "FK_WARM_D")
        p.label("FK_WARM_O")
        p.add(dma(None, vL16, SWO, sT0, SCR, "warm", m0_base=sW1k))
        p.label("FK_WARM_D")
    p.add(MFMA(Sb[0], KFr[1], Q[0], "0"))
    p.add(MFMA(NM, KFr[1], Q[1], "0"))
    p("v_max3_f32", v(vA), v(Sb[0]), v(Sb[0] + 1), v(Sb[0] + 2))
    for i in range(3, 15, 2):
        p("v_max3_f32", v(vA), v(vA), v(Sb[0] + i), v(Sb[0] + i + 1))
    p("v_max3_f32", v(vB), v(NM), v(NM + 1), v(Sb[0] + 15))
    for i in range(2, 16, 2):
        p("v_max3_f32", v(vB), v(vB), v(NM + i), v(NM + i + 1))
    p("v_max_f32", v(vA), v(vA), v(vB))
    p("v_mov_b32", v(vC), v(vA))
    p("v_permlane32_swap_b32", v(vA), v(vC))
    p("v_max_f32", v(vA), v(vA), v(vC))
    for i in range(16):
        p("v_sub_f32", v(NM + i), 0, v(vA))
    p.add(MFMA(Sb[0], KFr[0], Q[0], NM))
    p.add(T.ts(7, "p3start"))

    U0 = 4 * P0

    def if_z2(block, tag):
        lab = p.newlabel(tag)
        return [I("s_sub_u32", s(sT0), s(sSLOT), 6), I("s_cmp_lt_u32", s(sT0), 6), I("s_cbranch_scc1", lab)] + block + [Ins("label", lab)]

    def stats_loads():
        out = [I("s_mul_i32", s(sO2), s(sTT), NPART * 256), I("s_add_u32", s(sO2), s(sO2), hex(WS_ST)),
               I("s_add_u32", s(sO3), s(sO2), 4096), I("v_lshlrev_b32", v(vA), 2, v(vL))]
        for j in range(NPART):
            out.append(I("buffer_load_dword", v(STT + j), v(vA), s(SWS, 4), s(sO2 if j < 16 else sO3),
                         mods=f"offen offset:{256 * (j % 16)} sc1"))
        return out

    def ev_norm():
        out = []
        lp, lc, ld, l1 = p.newlabel("NL"), p.newlabel("NC"), p.newlabel("ND"), p.newlabel("N1")
        out += [I("s_mov_b32", s(sCnt), 0), I("s_branch", lc), Ins("label", lp)]
        out += stats_loads()
        out.append(Ins("label", lc))
        out.append(I("v_max3_u32", v(vB), v(STT), v(STT + 1), v(STT + 2)))
        for j in range(3, NPART - 1, 2):
            out.append(I("v_max3_u32", v(vB), v(vB), v(STT + j), v(STT + j + 1)))
        out.append(I("v_max_u32", v(vB), v(vB), v(STT + NPART - 1)))
        out += [I("v_cmp_eq_u32", "vcc", -1, v(vB)), I("s_cmp_eq_u64", "vcc", 0), I("s_cbranch_scc1", ld),
                I("s_sleep", 2), I("s_add_u32", s(sCnt), s(sCnt), 1), I("s_cmp_lt_u32", s(sCnt), SPIN),
                I("s_cbranch_scc1", lp), Ins("label", ld)]
        out += T.ts(9, "statsok")
        for j in range(2, NPART, 2):
            out.append(I("v_add_f32", v(STT), v(STT), v(STT + j)))
            out.append(I("v_add_f32", v(STT + 1), v(STT + 1), v(STT + j + 1)))
        s1, s2, r_, nmr, aw, ar = STT + 2, STT + 3, STT + 4, STT + 5, STT + 6, STT + 7
        out.append(I("v_add_f32", v(s1), v(STT), v(STT + 1)))
        out.append(I("v_mov_b32", v(s2), v(s1)))
        out.append(I("v_and_b32", v(aw), 31, v(vL)))
        out.append(I("v_lshrrev_b32", v(vB), 5, v(vL)))
        out.append(I("v_permlane32_swap_b32", v(s1), v(s2)))
        out.append(I("v_mul_u32_u24", v(aw), 72, v(aw)))
        out.append(I("v_lshl_add_u32", v(aw), v(vB), 3, v(aw)))
        out.append(I("s_lshl_b32", s(sT0), s(sW), 13))
        out.append(I("v_add_u32", v(aw), s(sT0), v(aw)))
        out.append(I("v_mul_f32", v(s1), f32(1.0 / FH), v(s1)))
        out.append(I("v_mul_f32", v(s2), f32(1.0 / FH), v(s2)))
        out.append(I("v_fma_f32", v(s2), "-" + v(s1), v(s1), v(s2)))
        out.append(I("v_max_f32", v(s2), 0, v(s2)))
        out.append(I("v_add_f32", v(s2), f32(1e-5), v(s2)))
        out.append(I("v_rsq_f32", v(r_), v(s2)))
        out.append(I("v_bfe_u32", v(ar), v(vL), 2, 2))
        out.append(I("v_lshl_add_u32", v(ar), v(vB), 3, v(ar)))
        out.append(I("v_mul_u32_u24", v(ar), 72, v(ar)))
        out.append(I("v_bfe_u32", v(vB), v(vL), 4, 1))
        out.append(I("v_lshl_add_u32", v(ar), v(vB), 5, v(ar)))
        out.append(I("v_and_b32", v(vB), 3, v(vL)))
        out.append(I("v_lshl_add_u32", v(ar), v(vB), 3, v(ar)))
        out.append(I("v_add_u32", v(ar), s(sT0), v(ar)))
        out.append(I("v_mul_f32", v(nmr), v(s1), v(r_)))
        out.append(I("v_sub_f32", v(nmr), 0, v(nmr)))
        out.append(I("s_lshl_b32", s(sT0), s(sSLOT), 1))
        out.append(I("s_add_u32", s(sT1), s(sT0), 16))
        out.append(I("s_lshl_b32", s(sT0), s(sSLOT), 2))
        out.append(I("s_sub_u32", s(sT0), s(sT0), 48))
        out.append(I("s_cmp_lt_u32", s(sSLOT), 12))
        out.append(I("s_cselect_b32", s(sT0), s(sT1), s(sT0)))
        out.append(I("s_add_u32", s(sT0), s(sT0), s(sCT)))
        out.append(I("s_lshl_b32", s(sO0), s(sT0), 7))
        out.append(I("s_lshl_b32", s(sO1), s(sTT), 1))
        out.append(I("s_add_u32", s(sO0), s(sO0), s(sO1)))
        out.append(I("s_lshl_b32", s(sO0), s(sO0), 10))
        out.append(I("s_add_u32", s(sO0), s(sO0), hex(WS_Z2F)))
        out.append(I("s_add_u32", s(sO1), s(sO0), 2 * 128 * 1024))
        for pr in range(2):
            if pr == 1:
                out += [I("s_cmp_lt_u32", s(sSLOT), 12), I("s_cbranch_scc1", l1)]
            pk = TMP + 8 * pr
            tr = STT + 8 + 8 * pr
            for i in range(16):
                out.append(I("v_fma_f32", v(G[pr] + i), v(G[pr] + i), v(r_), v(nmr)))
            out += cvt_stream(pk, G[pr])
            for jj in range(4):
                out.append(I("ds_write_b64", v(aw), v(pk + 2 * jj, 2), mods=f"offset:{pr * 2304 + jj * 16}", tok_w=f"tw{pr}"))
            out.append(need(f"tw{pr}"))
            for m in range(2):
                for t in range(2):
                    out.append(I("ds_read_b64_tr_b16", v(tr + 4 * m + 2 * t, 2), v(ar), mods=f"offset:{pr * 2304 + (16 * m + 4 * t) * 72}"))
            for m in range(2):
                out.append(I("buffer_store_dwordx4", v(tr + 4 * m, 4), v(vL16), s(SWS, 4), s([sO0, sO1][pr]),
                             mods=f"offen offset:{1024 * m} sc1", tok_w="z2s"))
        out.append(Ins("label", l1))
        return out

    def f3_poll():
        blk = [I("s_cmp_lt_u32", s(sFB), 4), I("s_cselect_b32", s(sT1), 15, 31),
               I("v_and_b32", v(vPa), s(sT1), v(vL)), I("v_lshlrev_b32", v(vPa), 2, v(vPa)),
               I("s_lshl_b32", s(sT0), s(sFB), 3), I("s_lshr_b32", s(sT1), s(sTB), 2), I("s_add_u32", s(sT0), s(sT0), s(sT1)),
               I("s_lshl_b32", s(sT0), s(sT0), 7), I("s_add_u32", s(sT0), s(sT0), hex(WS_FL + FL_Z2)),
               I("v_add_u32", v(vPa), s(sT0), v(vPa)),
               I("s_lshl_b32", s(sT0), s(sFB), 3), I("s_add_u32", s(sT1), s(sT0), 24), I("s_sub_u32", s(sT0), s(sT0), 16),
               I("s_cmp_lt_u32", s(sFB), 5), I("s_cselect_b32", s(sT0), s(sT1), s(sT0)),
               I("s_lshr_b32", s(sT1), s(sTB), 1), I("s_lshl_b32", s(sT1), s(sT1), 7), I("s_add_u32", s(sT0), s(sT0), s(sT1)),
               I("s_add_u32", s(sT0), s(sT0), hex(WS_FL + FL_Z1)),
               I("s_mov_b32", "exec_lo", 0), I("v_and_b32", v(vPa), 4, v(vPa)), I("v_add_u32", v(vPa), s(sT0), v(vPa)),
               I("s_mov_b32", "exec_lo", -1),
               I("buffer_load_dword", v(vPoll), v(vPa), s(SWS, 4), "0", mods="offen sc1")]
        return wave0(blk, "F3I")

    Z1 = 32
    UT = 40
    sTS, sX = sXoff, sW0c

    def u_loads():
        out = []
        out.append(I("s_lshl_b32", s(sTS), s(sTB), 1))
        out.append(I("s_add_u32", s(sTS), s(sTS), s(sKH)))
        out.append(I("v_and_b32", v(vA), 31, v(vL)))
        out.append(I("v_lshlrev_b32", v(vB), 1, v(vA)))
        out.append(I("s_lshl_b32", s(sT0), s(sTS), 6))
        out.append(I("buffer_load_ushort", v(vBs), v(vB), s(SBSP, 4), s(sT0), mods="offen"))
        out.append(I("s_lshl_b32", s(sX), s(sFB), 2))
        out.append(I("s_add_u32", s(sX), s(sX), s(sQP)))
        out.append(I("s_mul_i32", s(sT0), s(sTS), 28))
        out.append(I("s_add_u32", s(sT0), s(sT0), s(sX)))
        out.append(I("s_lshl_b32", s(sT0), s(sT0), 11))
        out.append(I("s_add_u32", s(sT0), s(sT0), hex(WS_Z1F)))
        for m in range(2):
            out.append(I("buffer_load_dwordx4", v(Z1 + 4 * m, 4), v(vL16), s(SWS, 4), s(sT0), mods=f"offen offset:{1024 * m} sc1"))
        return out

    def u_write():
        out = [I("s_lshl_b32", s(sT0), s(sW), 13), I("v_add_u32", v(vA), s(sT0), v(vL16))]
        for c in range(4):
            out.append(I("ds_write_b128", v(vA), v(G[1] + 4 * c, 4), mods=f"offset:{c * 1024}", tok_w="uw"))
        out.append(I("v_xor_b32", v(vNMR), 32768, v(vA)))
        return out

    def u_read():
        return [I("ds_read_b128", v(TMP + 4 * c, 4), v(vNMR), mods=f"offset:{c * 1024}") for c in range(4)]

    def u_compute():
        out = []
        out.append(I("s_mul_i32", s(sO1), s(sTS), 88))
        out.append(I("s_lshl_b32", s(sT0), s(sX), 1))
        out.append(I("s_add_u32", s(sO1), s(sO1), s(sT0)))
        out.append(I("s_add_u32", s(sO1), s(sO1), 32))
        out.append(I("s_lshl_b32", s(sO1), s(sO1), 10))
        out.append(I("s_add_u32", s(sO1), s(sO1), hex(WS_AF)))
        out.append(I("v_lshlrev_b32", v(vBs), 16, v(vBs)))
        for i in range(8):
            out.append(I("v_lshlrev_b32", v(UT + 2 * i), 16, v(Z1 + i)))
            out.append(I("v_and_b32", v(UT + 2 * i + 1), "0xffff0000", v(Z1 + i)))
        for i in range(16):
            out.append(I("v_add_f32", v(G[0] + i), v(G[0] + i), v(vBs)))
        for i in range(16):
            out.append(I("v_add_f32", v(G[0] + i), v(G[0] + i), v(TMP + i)))
        for i in range(16):
            out.append(I("v_mul_f32", v(G[0] + i), v(G[0] + i), v(UT + i)))
        for i in range(8):
            out.append(C(Z1 + i, G[0] + 2 * i))
        for m in range(2):
            out.append(I("buffer_store_dwordx4", v(Z1 + 4 * m, 4), v(vL16), s(SWS, 4), s(sO1),
                         mods=f"offen offset:{1024 * m} sc1", tok_w="us"))
        return out

    def wout_dma(half):
        out = []
        base = WRB if half == 0 else 0
        for i in range(7):
            out.append(I("s_mov_b32", s(sSo), hex((i * 64 + 448 * half) * 1024)))
            out += dma(None, vWo, SWOUT, sSo, base + i * 8192, "wout", m0_base=sW1k)
        return out

    PEND = P0 + 16
    BU1 = PEND + 1
    BU2 = PEND + 2
    assert BU2 <= 24

    def body(B, spatial):
        act = (lambda U: U0 <= U < U0 + 64) if spatial else (lambda U: False)
        side = {}
        pre_t = {}
        for f in range(24):
            F = 24 * B + f
            ev = []
            if F % 2 == 0:
                U = F // 2
                u = f // 2
                if act(U) and act(U + 8):
                    ev += [I("s_mov_b32", "m0", s(sZb if u & 4 else sZa)),
                           I("buffer_load_dwordx4", v(vL16), s(SWS, 4), s(sSoZ), mods=f"offen offset:{(u & 3) * 1024} sc1 lds", tok_w=f"z{(u + 8) % 12}")]
                    if u & 3 == 3:
                        ev.append(I("s_add_u32", s(sSoZ), s(sSoZ), 4096))
            else:
                U = (F + 3) // 2
                u = (f + 3) // 2
                if U % 4 == 0:
                    Pp = U // 4
                    c = Pp % 3
                    pre, post = [], []
                    if act(U):
                        pre.append(need(f"w{c}"))
                    if act(U - 1):
                        pre.append(need(v(WFs[(U - 1) & 1][0], 4), v(WFs[(U - 1) & 1][1], 4)))
                    if c in (1, 2):
                        n = 2 * B + c
                        if n <= 15:
                            pre.append(need(f"kv{n & 1}"))
                        if n + 2 <= 15:
                            post += kv_dma(n & 1, f"kv{n & 1}")
                        if c == 1:
                            post += kv_toggle()
                    if act(U + 8):
                        cc = (Pp + 2) % 3
                        post += dma(None, vD0, SWSP, sSoW, WRB + cc * 16384, f"w{cc}", m0_base=sW2k)
                        post += dma(None, vD1, SWSP, sSoW, WRB + cc * 16384 + 1024, f"w{cc}", m0_base=sW2k)
                        post.append(I("s_add_u32", s(sSoW), s(sSoW), 128))
                    if Pp == N_FLAG:
                        pre.append(need("z2s"))
                        post = if_z2(set_flag(0xff00), "NF") + post
                    if spatial and Pp == P0 - LEAD:
                        pre += T.ts(10, "f3wait") + wave0(poll(SWS, 1, first_issued=True), "F3") + T.ts(11, "f3ok")
                        for k in range(8):
                            uu = U0 + k - 12 * B
                            post += [I("s_mov_b32", "m0", s(sZb if uu & 4 else sZa)),
                                     I("buffer_load_dwordx4", v(vL16), s(SWS, 4), s(sSoZ), mods=f"offen offset:{(uu & 3) * 1024} sc1 lds", tok_w=f"z{uu % 12}")]
                            if uu & 3 == 3:
                                post.append(I("s_add_u32", s(sSoZ), s(sSoZ), 4096))
                    if Pp == BU1:
                        if spatial:
                            pre.append(need("uw"))
                            post = u_read() + post
                        post += wout_dma(0)
                    if Pp == BU2:
                        if spatial:
                            pre.append(need("us"))
                            post = set_flag(0x20000) + post
                        post += wout_dma(1)
                    if pre or post:
                        ev += pre + [I("s_barrier")]
                        if act(U):
                            ev += rd(U, u)
                        ev += post
                        side[f] = ev
                        continue
                if act(U):
                    ev += rd(U, u)
            side[f] = ev
        T0 = 8 * B
        blocks = {}
        if B == 0:
            blocks[N_ISSUE] = if_z2(stats_loads(), "NI")
            blocks[N_CHECK] = T.ts(8, "nchk") + if_z2(ev_norm(), "NE")
        if spatial:
            tz = (8 * P0) // 3 - 1
            if tz // 8 == B:
                blocks[tz % 8] = blocks.get(tz % 8, []) + [I("v_mov_b32", v(G[0] + i), 0) for i in range(32)]
            tp = (8 * (P0 - LEAD) - 3) // 3 - 1
            if tp // 8 == B:
                blocks[tp % 8] = blocks.get(tp % 8, []) + f3_poll()
            tl = (8 * PEND) // 3 - 4
            if tl // 8 == B:
                blocks[tl % 8] = blocks.get(tl % 8, []) + u_loads()
            tw = (8 * PEND - 1) // 3 + 1
            if tw // 8 == B:
                blocks[tw % 8] = blocks.get(tw % 8, []) + u_write()
            tc = (8 * BU1 - 3) // 3 + 1
            if tc // 8 == B:
                blocks[tc % 8] = blocks.get(tc % 8, []) + u_compute()
        out = []
        for t in range(8):
            par, tau = t >> 2, t & 3
            j, q = tau >> 1, tau & 1
            cur, prv = Sb[q], Sb[1 - q]
            jp = j if q == 1 else 1 - j
            jn = j if q == 0 else 1 - j
            last = (B == 7 and par == 1)
            qk = None if (last and tau == 3) else MFMA(prv, KFr[jn], Q[1 - q], NM)
            pv1 = MFMA(O[1 - q], VFr[jp] + 4, P + 4, O[1 - q])
            pv0 = MFMA(O[q], VFr[j], P, O[q])
            X = []
            for k in range(3):
                F = 24 * B + 3 * t + k
                U, tt = F // 2, F & 1
                X.append(([MFMA(G[tt], ZFr[U & 1], WFs[U & 1][tt], G[tt])] if act(U) else []) + side[3 * t + k])
            pre, A = list(blocks.get(t, [])), []
            if tau == 0:
                A = kread(par, 1)
            elif tau == 1:
                A = vreads(par, 1)
            elif tau == 2 and not last:
                if par == 1:
                    pre.append(tog(vK, 16384))
                A = kread(1 - par, 0)
            elif tau == 3 and not last:
                if par == 1:
                    pre.append(tog(vV, 16384))
                A = vreads(1 - par, 0)
            seq = pre + [E(cur + 0), E(cur + 1), C(P + 6, prv + 12), C(P + 7, prv + 14), qk, E(cur + 2), E(cur + 3), pv1] + A + \
                [E(cur + 4), E(cur + 5), C(P + 0, cur + 0), C(P + 1, cur + 2), E(cur + 6), E(cur + 7)] + X[0] + \
                [E(cur + 8), E(cur + 9), C(P + 2, cur + 4), C(P + 3, cur + 6)] + X[1] + [E(cur + 10), E(cur + 11), pv0] + \
                [E(cur + 12), E(cur + 13), C(P + 4, cur + 8), C(P + 5, cur + 10)] + X[2] + [E(cur + 14), E(cur + 15)]
            out += [x for x in seq if x is not None]
        if spatial:
            out += [tog(vZ[0], 4096), tog(vZ[1], 4096), I("s_xor_b32", s(sZa), s(sZa), 4096), I("s_xor_b32", s(sZb), s(sZb), 4096)]
        return out

    def rd(U, u):
        c, ks = (U // 4) % 3, U & 3
        return [need(f"z{u % 12}"),
                I("ds_read_b128", v(WFs[U & 1][0], 4), v(vWs[ks]), mods=f"offset:{c * 16384}"),
                I("ds_read_b128", v(ZFr[U & 1], 4), v(vZ[1 if u & 4 else 0]), mods=f"offset:{(u & 3) * 1024}"),
                I("ds_read_b128", v(WFs[U & 1][1], 4), v(vWs[ks]), mods=f"offset:{c * 16384 + 4096}")]

    def sig(b):
        return [(i.op, tuple(i.ops), i.mods, i.tok_w, i.tok_r) for i in b]

    def variant(spatial, tag):
        bodies = [body(B, spatial) for B in range(8)]
        sigs = [sig(b) for b in bodies]
        B = 0
        while B < 8:
            E_ = B
            while E_ + 1 < 8 and sigs[E_ + 1] == sigs[B]:
                E_ += 1
            if E_ > B:
                lab = f"FK_LOOP_{tag}{B}"
                p("s_mov_b32", s(sIt), 0)
                p.label(lab)
                p.add(bodies[B])
                p("s_add_u32", s(sIt), s(sIt), 1)
                p("s_cmp_lt_u32", s(sIt), E_ - B + 1)
                p("s_cbranch_scc1", lab)
            else:
                p.add(bodies[B])
            p.add(T.ts(12 + E_, f"B{E_}end"))
            B = E_ + 1

    p("s_cmp_ge_u32", s(sQB), 7)
    p("s_cbranch_scc1", "FK_NOSP")
    variant(True, "S")
    p("s_branch", "FK_ATT_EPI")
    p.label("FK_NOSP")
    variant(False, "N")
    p.label("FK_ATT_EPI")
    p.add([C(P + 6, Sb[1] + 12), C(P + 7, Sb[1] + 14), MFMA(O[1], VFr[1] + 4, P + 4, O[1])])
    p("s_mul_i32", s(sT0), s(sW), 3072)
    p("v_add_u32", v(vA), s(sT0), v(vL16))
    p("s_xor_b32", s(sT1), s(sW), 4)
    p("s_mul_i32", s(sT1), s(sT1), 3072)
    p("v_add_u32", v(vB), s(sT1), v(vL16))
    p("s_mul_i32", s(sO0), s(sTA), 88)
    p("s_add_u32", s(sO0), s(sO0), s(sHEAD))
    p("s_lshl_b32", s(sO0), s(sO0), 10)
    p("s_add_u32", s(sO0), s(sO0), hex(WS_AF))
    for c in range(3):
        p("ds_write_b128", v(vA), v(O[1] + 4 * c, 4), mods=f"offset:{XCH + c * 1024}", tok_w="xw")
    p.add([need("xw", "wout"), I("s_barrier")])
    for c in range(3):
        p("ds_read_b128", v(Sb[0] + 4 * c, 4), v(vB), mods=f"offset:{XCH + c * 1024}")
    p("v_min_u32", v(vPa), 6, v(vL))
    p("v_lshlrev_b32", v(vPa), 2, v(vPa))
    p("s_lshl_b32", s(sT0), s(sTB), 7)
    p("s_add_u32", s(sT0), s(sT0), hex(WS_FL + FL_U))
    p("v_add_u32", v(vPa), s(sT0), v(vPa))
    p("s_lshr_b32", s(sT0), s(sTB), 1)
    p("s_lshl_b32", s(sT0), s(sT0), 7)
    p("s_add_u32", s(sT0), s(sT0), hex(WS_FL + FL_Z1 + 40))
    p("s_mov_b32", "exec_lo", 0)
    p("v_mov_b32", v(vPa), s(sT0))
    p("s_mov_b32", "exec_lo", -1)
    for i in range(9):
        p("v_add_f32", v(O[0] + i), v(O[0] + i), v(Sb[0] + i))
    p("v_add_f32", v(vA), f"abs({v(O[0])})", f"abs({v(O[0] + 1)})")
    for i in range(2, 8):
        p("v_add_f32", v(vA), v(vA), f"abs({v(O[0] + i)})")
    p("v_mov_b32", v(vB), f32(2.0 ** 126))
    p("v_cmp_nlt_f32", "vcc", v(vA), v(vB))
    p("v_mov_b32", v(vB), f32(2.0 ** 100))
    p("v_cmp_nlt_f32", s(sO2, 2), v(O[0] + 8), v(vB))
    p("s_or_b64", "vcc", "vcc", s(sO2, 2))
    p("v_mov_b32", v(vB), f32(2.0 ** -100))
    p("v_cmp_ngt_f32", s(sO2, 2), v(O[0] + 8), v(vB))
    p("s_or_b64", "vcc", "vcc", s(sO2, 2))
    p("s_cmp_lg_u64", "vcc", 0)
    p("s_cbranch_scc1", "FK_FB")
    p.label("FK_FBRET")
    p("v_rcp_f32", v(vA), v(O[0] + 8))
    for i in range(8):
        p("v_mul_f32", v(O[0] + i), v(O[0] + i), v(vA))
    OP = 248
    for i in range(4):
        p.add(C(OP + i, O[0] + 2 * i))
    p("buffer_store_dwordx4", v(OP, 4), v(vL16), s(SWS, 4), s(sO0), mods="offen sc1", tok_w="os")
    p.add(T.ts(20, "ostore"))
    sTI, sKQ = sRT, sCT
    p("s_and_b32", s(sTI), s(sW), 1)
    p("s_lshr_b32", s(sKQ), s(sW), 1)
    p.add(wave0([I("buffer_load_dword", v(vPoll), v(vPa), s(SWS, 4), "0", mods="offen sc1")], "F4I"))
    vR0, vR1, vG = 8, 9, 10
    WFR = 128
    AFR = 64
    ACB = [32, 48]
    ACA = [96, 112]
    p("v_lshrrev_b32", v(vB), 5, v(vL))
    p("v_bfe_u32", v(vA), v(vL), 2, 2)
    p("v_lshl_add_u32", v(vC), v(vB), 2, v(vA))
    p("v_lshlrev_b32", v(vC), 7, v(vC))
    p("v_lshrrev_b32", v(vA), 1, v(vA))
    p("v_lshl_add_u32", v(vC), v(vA), 6, v(vC))
    p("v_bfe_u32", v(vA), v(vL), 4, 1)
    p("v_lshl_add_u32", v(vC), v(vA), 5, v(vC))
    p("v_and_b32", v(vA), 3, v(vL))
    p("v_lshl_add_u32", v(vC), v(vA), 3, v(vC))
    p("s_mul_i32", s(sT0), s(sKQ), 28672)
    p("s_add_u32", s(sT1), s(sT0), WRB)
    p("s_sub_u32", s(sT0), s(sT0), 57344)
    p("s_cmp_lt_u32", s(sKQ), 2)
    p("s_cselect_b32", s(sT0), s(sT1), s(sT0))
    p("v_add_u32", v(vR0), s(sT0), v(vC))
    p("v_xor_b32", v(vR1), 64, v(vR0))

    def wfr_reads(k0, k1):
        out = []
        for k in range(k0, k1):
            for ni in range(2):
                d = WFR + (k * 2 + ni) * 4
                out.append(I("ds_read_b64_tr_b16", v(d, 2), v([vR0, vR1][ni]), mods=f"offset:{k * 2048}"))
                out.append(I("ds_read_b64_tr_b16", v(d + 2, 2), v([vR0, vR1][ni]), mods=f"offset:{k * 2048 + 1024}"))
        return out

    p.add(wfr_reads(0, 7))
    p.add(wave0(poll(SWS, 1, first_issued=True), "F4"))
    p.add([need("os"), I("s_barrier")])
    p.add(T.ts(21, "x2a"))
    p.add(set_flag(0x3c0000))
    p("s_lshl_b32", s(sT0), s(sTB), 1)
    p("s_add_u32", s(sT0), s(sT0), s(sTI))
    p("s_lshl_b32", s(sT2), s(sT0), 7)
    p("s_add_u32", s(sT2), s(sT2), hex(WS_G))
    p("s_mul_i32", s(sT0), s(sT0), 88)
    p("s_lshl_b32", s(sO0), s(sT0), 10)
    p("s_add_u32", s(sO0), s(sO0), hex(WS_AF))
    p("s_mul_i32", s(sT1), s(sKQ), 14 * 1024)
    p("s_add_u32", s(sO1), s(sO0), s(sT1))
    p("s_add_u32", s(sO1), s(sO1), 32 * 1024)
    for k in range(14):
        p("buffer_load_dwordx4", v(AFR + 4 * k, 4), v(vL16), s(SWS, 4), s(sO1), mods=f"offen offset:{(k & 3) * 1024} sc1")
        if k & 3 == 3:
            p("s_add_u32", s(sO1), s(sO1), 4096)
    p("v_and_b32", v(vA), 31, v(vL))
    p("v_lshlrev_b32", v(vA), 2, v(vA))
    p("buffer_load_dword", v(vG), v(vA), s(SWS, 4), s(sT2), mods="offen sc1")
    p.add(wfr_reads(7, 14))
    p.add([I("s_waitcnt", "lgkmcnt(0)"), I("s_barrier")])
    p.add(T.ts(22, "x2b"))
    for i in range(8):
        p("s_mov_b32", s(sSo), hex(i * 65536))
        p.add(dma(None, vWo, SWO, sSo, i * 8192, "wo", m0_base=sW1k))
    p("v_and_b32", v(vPa), 31, v(vL))
    p("v_lshlrev_b32", v(vPa), 2, v(vPa))
    p("s_lshl_b32", s(sT0), s(sTB), 7)
    p("s_add_u32", s(sT0), s(sT0), hex(WS_FL + FL_O))
    p("v_add_u32", v(vPa), s(sT0), v(vPa))
    for k in range(14):
        for ni in range(2):
            p.add(MFMA(ACB[ni], WFR + (k * 2 + ni) * 4, AFR + 4 * k, "0" if k == 0 else ACB[ni]))
    p.add(T.ts(23, "p4a"))
    p("s_lshl_b32", s(sT0), s(sKQ), 14)
    p("v_add_u32", v(vR0), s(sT0), v(vC))
    p("v_xor_b32", v(vR1), 64, v(vR0))
    p.add(wave0(poll(SWS, 1), "F5"))
    p.add([need("wo"), I("s_barrier")])
    p.add(T.ts(24, "f5ok"))
    p("s_lshl_b32", s(sT1), s(sKQ), 13)
    p("s_add_u32", s(sO1), s(sO0), s(sT1))
    for k in range(8):
        p("buffer_load_dwordx4", v(AFR + 4 * k, 4), v(vL16), s(SWS, 4), s(sO1), mods=f"offen offset:{(k & 3) * 1024} sc1")
        if k & 3 == 3:
            p("s_add_u32", s(sO1), s(sO1), 4096)
    p.add(wfr_reads(0, 8))
    p("v_sub_f32", v(vA), "1.0", v(vG))
    for ni in range(2):
        for i in range(16):
            p("v_mul_f32", v(ACB[ni] + i), v(ACB[ni] + i), v(vA))
    EB = 65536
    PITCH = 272
    IMG = 64 * PITCH
    vWa, vRa, vOa = 11, 12, 13
    p("v_and_b32", v(vA), 31, v(vL))
    p("s_lshl_b32", s(sT0), s(sTI), 5)
    p("v_add_u32", v(vA), s(sT0), v(vA))
    p("v_mul_u32_u24", v(vA), PITCH, v(vA))
    p("v_lshrrev_b32", v(vB), 5, v(vL))
    p("v_lshl_add_u32", v(vA), v(vB), 4, v(vA))
    p("s_mul_i32", s(sT0), s(sKQ), IMG)
    p("s_add_u32", s(sT0), s(sT0), EB)
    p("v_add_u32", v(vWa), s(sT0), v(vA))
    p("v_lshrrev_b32", v(vB), 3, v(0))
    p("v_and_b32", v(vC), 7, v(0))
    p("v_mul_u32_u24", v(vRa), PITCH, v(vB))
    p("v_lshl_add_u32", v(vRa), v(vC), 5, v(vRa))
    p("v_add_u32", v(vRa), EB, v(vRa))
    p("v_lshlrev_b32", v(vB), 10, v(vB))
    p("v_lshl_add_u32", v(vOa), v(vC), 4, v(vB))
    p("s_lshl_b32", s(sT0), s(sTB), 16)
    p("s_lshl_b32", s(sT1), s(sQB), 7)
    p("s_add_u32", s(sO2), s(sT0), s(sT1))
    for k in range(8):
        for ni in range(2):
            p.add(MFMA(ACA[ni], WFR + (k * 2 + ni) * 4, AFR + 4 * k, "0" if k == 0 else ACA[ni]))
    p.add(T.ts(25, "p4b"))
    for ni in range(2):
        for i in range(16):
            p("v_fmac_f32", v(ACB[ni] + i), v(ACA[ni] + i), v(vG))
        for j in range(4):
            p("ds_write_b128", v(vWa), v(ACB[ni] + 4 * j, 4), mods=f"offset:{ni * 128 + 32 * j}", tok_w="rw")
    p.add([need("rw"), I("s_barrier")])
    R = 128
    for kq in range(4):
        for c in range(2):
            p("ds_read_b128", v(R + 8 * kq + 4 * c, 4), v(vRa), mods=f"offset:{kq * IMG + 16 * c}")
    for i in range(8):
        p("v_add_f32", v(R + i), v(R + i), v(R + 8 + i))
    for i in range(8):
        p("v_add_f32", v(R + 16 + i), v(R + 16 + i), v(R + 24 + i))
    for i in range(8):
        p("v_add_f32", v(R + i), v(R + i), v(R + 16 + i))
    for i in range(4):
        p.add(C(R + 8 + i, R + 2 * i))
    p("buffer_store_dwordx4", v(R + 8, 4), v(vOa), s(SOUT, 4), s(sO2), mods="offen")
    p.add(T.ts(26, "end") + T.flush(SWS, sW, vA, sT0))
    p("s_endpgm")
    p.label("FK_FB")
    sKo, sVo = sO2, sO3
    p("s_lshl_b32", s(sT0), s(sHEAD), 16)
    p("s_add_u32", s(sKo), s(sT0), hex(WS_KF))
    p("v_mov_b32", v(vA), "0xff800000")
    p("s_mov_b32", s(sIt), 0)
    p.label("FK_FB1")
    p("buffer_load_dwordx4", v(KFr[0], 4), v(vL16), s(SWS, 4), s(sKo), mods="offen sc1")
    p.add(MFMA(Sb[0], KFr[0], Q[0], "0"))
    for i in range(0, 16, 2):
        p("v_max3_f32", v(vA), v(vA), v(Sb[0] + i), v(Sb[0] + i + 1))
    p("s_add_u32", s(sKo), s(sKo), 1024)
    p("s_add_u32", s(sIt), s(sIt), 1)
    p("s_cmp_lt_u32", s(sIt), 64)
    p("s_cbranch_scc1", "FK_FB1")
    p("v_mov_b32", v(vC), v(vA))
    p("v_permlane32_swap_b32", v(vA), v(vC))
    p("v_max_f32", v(vA), v(vA), v(vC))
    for i in range(16):
        p("v_sub_f32", v(NM + i), 0, v(vA))
        p("v_mov_b32", v(O[0] + i), 0)
    p("v_lshrrev_b32", v(vA), 5, v(vL))
    p("v_and_b32", v(vB), 15, v(vL))
    p("v_lshlrev_b32", v(vB), 4, v(vB))
    p("v_lshl_add_u32", v(vB), v(vA), 8, v(vB))
    p("s_add_u32", s(sKo), s(sT0), hex(WS_KF))
    p("s_add_u32", s(sVo), s(sT0), hex(WS_VF))
    p("s_mov_b32", s(sIt), 0)
    p.label("FK_FB2")
    p("buffer_load_dwordx4", v(KFr[0], 4), v(vL16), s(SWS, 4), s(sKo), mods="offen sc1")
    p("s_mov_b64", "exec", s(sVM, 2))
    p("buffer_load_dwordx4", v(VFr[0], 4), v(vB), s(SWS, 4), s(sVo), mods="offen sc1")
    p("buffer_load_dwordx4", v(VFr[0] + 4, 4), v(vB), s(SWS, 4), s(sVo), mods="offen offset:512 sc1")
    p("s_mov_b64", "exec", -1)
    p.add(MFMA(Sb[0], KFr[0], Q[0], NM))
    for i in range(16):
        p.add(E(Sb[0] + i))
    for i in range(8):
        p.add(C(P + i, Sb[0] + 2 * i))
    p.add(MFMA(O[0], VFr[0], P, O[0]))
    p.add(MFMA(O[0], VFr[0] + 4, P + 4, O[0]))
    p("s_add_u32", s(sKo), s(sKo), 1024)
    p("s_add_u32", s(sVo), s(sVo), 1024)
    p("s_add_u32", s(sIt), s(sIt), 1)
    p("s_cmp_lt_u32", s(sIt), 64)
    p("s_cbranch_scc1", "FK_FB2")
    p("s_branch", "FK_FBRET")
    p.label("FK_END")
    p("s_endpgm")
    txt = kernel_text(name, p.finish())
    return txt, T.names
```

```python
from common import *

GC1 = -2.0 * math.sqrt(2.0 / math.pi) * LOG2E
GC2 = GC1 * 0.044715

K1_LDS = 163840
K1_WGS = 224


class LdsAddr:
    def __init__(self, reg, bias=0):
        self.reg = reg
        self.bias = bias

    def at(self, off, span=0):
        pre = []
        if not (0 <= off - self.bias and off + span - self.bias <= 65535):
            nb = off // 32768 * 32768
            d = nb - self.bias
            if d > 0:
                pre.append(I("v_add_u32", v(self.reg), hex(d), v(self.reg)))
            else:
                pre.append(I("v_subrev_u32", v(self.reg), hex(-d), v(self.reg)))
            self.bias = nb
        return pre, off - self.bias

    def clone(self):
        return LdsAddr(self.reg, self.bias)


def gelu_stream(regs, temps, vC2):
    out = []
    n = len(temps)
    for b in range(0, len(regs), n):
        grp = regs[b:b + n]
        T = temps[:len(grp)]
        for x, t in zip(grp, T):
            out.append(I("v_mul_f32", v(t), v(x), v(x)))
        for x, t in zip(grp, T):
            out.append(I("v_fmaak_f32", v(t), v(vC2), v(t), f32(GC1)))
        for x, t in zip(grp, T):
            out.append(I("v_mul_f32", v(t), v(t), v(x)))
        for x, t in zip(grp, T):
            out.append(I("v_exp_f32", v(t), v(t)))
        for x, t in zip(grp, T):
            out.append(I("v_add_f32", v(t), "1.0", v(t)))
        for x, t in zip(grp, T):
            out.append(I("v_rcp_f32", v(t), v(t)))
        for x, t in zip(grp, T):
            out.append(I("v_mul_f32", v(x), v(x), v(t)))
    return out


def cvt_stream(dst, src, n=8):
    return [I("v_cvt_pk_bf16_f32", v(dst + i), v(src + 2 * i), v(src + 2 * i + 1)) for i in range(n)]


def k1(name):
    p = Prog()
    SX, SWIN, SWQ, SWS, SDBG, SGW = 40, 44, 48, 52, 56, 60
    sW, sRT, sCT, sRB, sSLOT, sT0, sT1, sT2 = 64, 65, 66, 67, 68, 69, 70, 71
    sXoff = 72
    sZc = 73
    sQc = 74
    sSo = 75
    sTT = 76
    sO0, sO1, sO2, sO3 = 77, 78, 79, 80
    sScale = 81
    sQKb = 82
    sCnt = 83
    sFT = 84
    sPoll = 88
    va = Alloc(1, 64)
    vL = va()
    vXs0, vXs1, vWin, vWq = va(), va(), va(), va()
    vXr = [va() for _ in range(4)]
    vWr = va()
    vL16 = va()
    vC2 = va()
    vT = [va() for _ in range(8)]
    vS1, vS2, vR, vNMR, vA, vB = va(), va(), va(), va(), va(), va()
    WF = va(24, 4)
    PK = va(8, 4)
    ACC = [64, 80, 96, 112]
    XF = 128

    p("s_cmp_ge_u32", s(2), K1_WGS)
    p("s_cbranch_scc1", "K1_END")
    T = Stamps(0, 88, 7)
    p.add(T.ts(0, True) + T.ts(1))
    load_kernargs(p)
    p("v_and_b32", v(vL), 63, v(0))
    p("v_lshrrev_b32", v(vA), 6, v(0))
    p("v_readfirstlane_b32", s(sW), v(vA))
    p("s_and_b32", s(sT0), s(2), 7)
    p("s_lshr_b32", s(sT1), s(2), 3)
    p("s_lshr_b32", s(sRB), s(sT0), 1)
    p("s_lshl_b32", s(sRB), s(sRB), 2)
    p("s_and_b32", s(sT2), s(sT1), 3)
    p("s_add_u32", s(sRB), s(sRB), s(sT2))
    p("s_and_b32", s(sSLOT), s(sT0), 1)
    p("s_mul_i32", s(sSLOT), s(sSLOT), 7)
    p("s_lshr_b32", s(sT2), s(sT1), 2)
    p("s_add_u32", s(sSLOT), s(sSLOT), s(sT2))
    p("s_and_b32", s(sRT), s(sW), 3)
    p("s_lshr_b32", s(sCT), s(sW), 2)
    p("s_lshl_b32", s(sTT), s(sRB), 2)
    p("s_add_u32", s(sTT), s(sTT), s(sRT))
    p("s_lshl_b32", s(sXoff), s(sRB), 17)
    p("s_lshl_b32", s(sQc), s(sSLOT), 8)
    p("s_add_u32", s(sT0), s(sQc), 1792)
    p("s_sub_u32", s(sT1), s(sQc), 1792)
    p("s_cmp_lt_u32", s(sSLOT), 7)
    p("s_cselect_b32", s(sZc), s(sT0), s(sT1))
    p("s_lshl_b32", s(sT0), s(sSLOT), 2)
    p("s_sub_u32", s(sT1), s(sT0), 28)
    p("s_cmp_lt_u32", s(sSLOT), 7)
    p("s_cselect_b32", s(sFT), s(sT0), s(sT1))
    p("s_add_u32", s(sFT), s(sFT), s(sCT))
    p("s_cmp_lt_u32", s(sSLOT), 12)
    p("s_cselect_b32", s(sQc), s(sQc), 0)
    p("v_lshrrev_b32", v(vA), 3, v(vL))
    p("v_lshrrev_b32", v(vB), 4, v(vL))
    p("v_and_b32", v(vT[0]), 7, v(vL))
    p("v_xor_b32", v(vT[1]), v(vT[0]), v(vB))
    p("v_lshlrev_b32", v(vT[1]), 4, v(vT[1]))
    p("s_lshl_b32", s(sT0), s(sW), 4)
    p("v_add_u32", v(vT[2]), s(sT0), v(vA))
    p("v_lshlrev_b32", v(vT[2]), 10, v(vT[2]))
    p("v_add_u32", v(vXs0), v(vT[2]), v(vT[1]))
    p("v_xor_b32", v(vXs1), 64, v(vXs0))
    p("v_add_u32", v(vXs1), 8192, v(vXs1))
    p("v_and_b32", v(vT[1]), 1, v(vB))
    p("v_lshlrev_b32", v(vT[1]), 2, v(vT[1]))
    p("v_xor_b32", v(vT[1]), v(vT[0]), v(vT[1]))
    p("v_lshlrev_b32", v(vT[1]), 4, v(vT[1]))
    p("s_lshl_b32", s(sT0), s(sW), 3)
    p("v_add_u32", v(vT[2]), s(sT0), v(vA))
    p("v_mul_u32_u24", v(vWin), 3584, v(vT[2]))
    p("v_add_u32", v(vWin), v(vWin), v(vT[1]))
    p("v_mul_u32_u24", v(vWq), 3072, v(vT[2]))
    p("v_add_u32", v(vWq), v(vWq), v(vT[1]))
    p("s_lshl_b32", s(sT2), s(sW), 10)
    sW1k = 85
    sW2k = 86
    p("s_mov_b32", s(sW1k), s(sT2))
    p("s_lshl_b32", s(sW2k), s(sW), 11)
    srd(p, SX, KA_X, S * D * 2)
    srd(p, SWIN, KA_WIN, D * 1792 * 2)
    srd(p, SWQ, KA_WQKV, D * 1536 * 2)
    srd(p, SWS, KA_WS, WS_BYTES)
    srd(p, SDBG, KA_DBG, 256)
    srd(p, SGW, KA_GW, 1024)

    SLOT = 32768

    def dma_step(st):
        out = []
        base = (st % 5) * SLOT
        tok = f"st{st}"
        if st < 8:
            out.append(I("s_add_u32", s(sSo), s(sXoff), st * 128))
            out += dma(None, vXs0, SX, sSo, base, tok, m0_base=sW2k)
            out += dma(None, vXs1, SX, sSo, base + 1024, tok, m0_base=sW2k)
            for pr in range(2):
                out.append(I("s_add_u32", s(sSo), s(sZc), st * 64 * 3584 + pr * 128))
                out += dma(None, vWin, SWIN, sSo, base + 16384 + pr * 8192, tok, m0_base=sW1k)
        else:
            pr = (st - 8) // 2
            kb = ((st - 8) % 2) * 256
            for i in range(4):
                out.append(I("s_add_u32", s(sSo), s(sQc), (kb + 64 * i) * 3072 + pr * 128))
                out += dma(None, vWq, SWQ, sSo, base + i * 8192, tok, m0_base=sW1k)
        return out

    for st in range(5):
        p.add(dma_step(st))

    p("v_and_b32", v(vA), 31, v(vL))
    p("v_lshrrev_b32", v(vB), 5, v(vL))
    p("v_bfe_u32", v(vT[0]), v(vA), 1, 3)
    p("v_xor_b32", v(vT[0]), v(vT[0]), v(vB))
    p("v_lshlrev_b32", v(vT[0]), 4, v(vT[0]))
    p("v_lshlrev_b32", v(vT[1]), 7, v(vA))
    p("s_lshl_b32", s(sT0), s(sRT), 12)
    p("v_add3_u32", v(vXr[0]), v(vT[0]), v(vT[1]), s(sT0))
    for ks in range(1, 4):
        p("v_xor_b32", v(vXr[ks]), 32 * ks, v(vXr[0]))
    p("v_bfe_u32", v(vT[0]), v(vL), 2, 2)
    p("v_lshl_add_u32", v(vT[1]), v(vB), 3, v(vT[0]))
    p("v_lshlrev_b32", v(vT[1]), 7, v(vT[1]))
    p("v_lshrrev_b32", v(vT[0]), 1, v(vT[0]))
    p("v_xor_b32", v(vT[0]), s(sCT), v(vT[0]))
    p("v_lshl_add_u32", v(vT[1]), v(vT[0]), 6, v(vT[1]))
    p("v_bfe_u32", v(vT[0]), v(vL), 4, 1)
    p("v_lshl_add_u32", v(vT[1]), v(vT[0]), 5, v(vT[1]))
    p("v_and_b32", v(vT[0]), 3, v(vL))
    p("v_lshl_add_u32", v(vWr), v(vT[0]), 3, v(vT[1]))
    p("v_lshlrev_b32", v(vL16), 4, v(vL))
    p("v_mov_b32", v(vC2), f32(GC2))

    aX = [LdsAddr(r) for r in vXr]
    aW = LdsAddr(vWr)

    def wread(dst, off, aWx):
        out = []
        pre, imm = aWx.at(off, 512)
        out += pre
        out.append(I("ds_read_b64_tr_b16", v(dst, 2), v(aWx.reg), mods=f"offset:{imm}"))
        out.append(I("ds_read_b64_tr_b16", v(dst + 2, 2), v(aWx.reg), mods=f"offset:{imm + 512}"))
        return out

    def sync(st, nxt, has_g1):
        out = [need(f"st{st}"), I("s_waitcnt", "lgkmcnt(0)"), I("s_barrier")]
        if nxt is not None and (nxt < 8 or (has_g1 and nxt < 12)):
            out += dma_step(nxt)
        return out

    def reads0(kap):
        st, ks = divmod(kap, 4)
        base = (st % 5) * SLOT
        out = []
        pre, imm = aX[ks].at(base)
        out += pre
        out.append(I("ds_read_b128", v(XF + 4 * kap, 4), v(vXr[ks]), mods=f"offset:{imm}"))
        for pr in range(2):
            out += wread(WF + (pr * 3 + kap % 3) * 4, base + 16384 + pr * 8192 + ks * 2048, aW)
        return out

    def mf0(kap):
        return [MFMA(ACC[pr], WF + (pr * 3 + kap % 3) * 4, XF + 4 * kap, "0" if kap == 0 else ACC[pr]) for pr in range(2)]

    RA = 2
    for kap in range(-RA, 32):
        kr = kap + RA
        if kr < 32:
            if kr % 4 == 0:
                st = kr // 4
                p.add([need(f"st{st}"), I("s_waitcnt", "lgkmcnt(0)"), I("s_barrier")])
                if st == 0:
                    p.add(T.ts(2))
                nxt = st + 4
                if st >= 1:
                    p.add(dma_step(nxt))
            p.add(reads0(kr))
        if kap >= 0:
            p.add(mf0(kap))

    p.add(T.ts(3))
    p("s_cmp_lt_u32", s(sSLOT), 7)
    p("s_cbranch_scc1", "K1_CLS_A")
    p("s_cmp_eq_u32", s(sSLOT), 7)
    p("s_cbranch_scc1", "K1_CLS_C")
    p("s_cmp_lt_u32", s(sSLOT), 12)
    p("s_cbranch_scc1", "K1_CLS_D")
    p("s_branch", "K1_CLS_E")

    def z1_epi():
        out = []
        out.append(I("s_mul_i32", s(sO0), s(sTT), 28))
        out.append(I("s_add_u32", s(sO0), s(sO0), s(sFT)))
        out.append(I("s_lshl_b32", s(sO0), s(sO0), 11))
        out.append(I("s_add_u32", s(sO0), s(sO0), hex(WS_Z1F)))
        out.append(I("s_add_u32", s(sO1), s(sO0), 4096))
        for pr in range(2):
            out += gelu_stream([ACC[pr] + i for i in range(16)], vT, vC2)
            out += cvt_stream(PK, ACC[pr])
            for m in range(2):
                out.append(I("buffer_store_dwordx4", v(PK + 4 * m, 4), v(vL16), s(SWS, 4), s([sO0, sO1][pr]),
                             mods=f"offen offset:{1024 * m}"))
        return out

    def z2_part1():
        out = []
        for pr in range(2):
            out += gelu_stream([ACC[pr] + i for i in range(16)], vT, vC2)
        regs = [ACC[pr] + i for pr in range(2) for i in range(16)]
        out.append(I("v_add_f32", v(vS1), v(regs[0]), v(regs[1])))
        out.append(I("v_mul_f32", v(vS2), v(regs[0]), v(regs[0])))
        out.append(I("v_add_f32", v(vA), v(regs[2]), v(regs[3])))
        out.append(I("v_mul_f32", v(vB), v(regs[1]), v(regs[1])))
        for i in range(4, 32, 2):
            out.append(I("v_add_f32", v(vS1), v(vS1), v(regs[i])))
            out.append(I("v_add_f32", v(vA), v(vA), v(regs[i + 1])))
        for i in range(2, 32, 2):
            out.append(I("v_fmac_f32", v(vS2), v(regs[i]), v(regs[i])))
            out.append(I("v_fmac_f32", v(vB), v(regs[i + 1]), v(regs[i + 1])))
        out.append(I("v_add_f32", v(vS1), v(vS1), v(vA)))
        out.append(I("v_add_f32", v(vS2), v(vS2), v(vB)))
        out.append(I("v_permlane32_swap_b32", v(vS1), v(vS2)))
        out.append(I("v_add_f32", v(vS1), v(vS1), v(vS2)))
        out.append(I("s_mul_i32", s(sO2), s(sTT), 14))
        out.append(I("s_lshl_b32", s(sO3), s(sSLOT), 1))
        out.append(I("s_add_u32", s(sO3), s(sO3), s(sCT)))
        out.append(I("s_add_u32", s(sO3), s(sO3), s(sO2)))
        out.append(I("s_lshl_b32", s(sO3), s(sO3), 8))
        out.append(I("s_add_u32", s(sO3), s(sO3), hex(WS_ST)))
        out.append(I("v_lshlrev_b32", v(vA), 2, v(vL)))
        out.append(I("buffer_store_dword", v(vS1), v(vA), s(SWS, 4), s(sO3), mods="offen sc1", tok_w="stat"))
        return out

    def flag_store():
        out = []
        lab = p.newlabel("K1_NF")
        out.append(I("s_cmp_lg_u32", s(sW), 0))
        out.append(I("s_cbranch_scc1", lab))
        out.append(I("s_lshl_b32", s(sT0), s(sRB), 4))
        out.append(I("s_lshl_b32", s(sT1), s(sSLOT), 1))
        out.append(I("s_add_u32", s(sT0), s(sT0), s(sT1)))
        out.append(I("v_mov_b32", v(vA), 0))
        out.append(I("v_mov_b32", v(vB), 1))
        out.append(I("s_mov_b64", "exec", 1))
        out.append(I("buffer_store_short", v(vB), v(vA), s(SDBG, 4), s(sT0), mods="offen sc1"))
        out.append(I("s_mov_b64", "exec", -1))
        out.append(Ins("label", lab))
        return out

    def z2_part2():
        out = []
        lp = p.newlabel("K1_POLL")
        ld = p.newlabel("K1_POLLD")
        out.append(I("s_lshl_b32", s(sT0), s(sRB), 4))
        out.append(I("v_mov_b32", v(vA), 0))
        out.append(I("s_mov_b32", s(sCnt), 0))
        out.append(Ins("label", lp))
        out.append(I("buffer_load_dwordx4", v(PK, 4), v(vA), s(SDBG, 4), s(sT0), mods="offen sc1"))
        out.append(I("v_and_b32", v(vB), v(PK), v(PK + 1)))
        out.append(I("v_or_b32", v(PK + 3), "0x10000", v(PK + 3)))
        out.append(I("v_and_b32", v(vB), v(vB), v(PK + 2)))
        out.append(I("v_and_b32", v(vB), v(vB), v(PK + 3)))
        out.append(I("v_readfirstlane_b32", s(sT1), v(vB)))
        out.append(I("s_cmp_eq_u32", s(sT1), "0x10001"))
        out.append(I("s_cbranch_scc1", ld))
        out.append(I("s_sleep", 2))
        out.append(I("s_add_u32", s(sCnt), s(sCnt), 1))
        out.append(I("s_cmp_lt_u32", s(sCnt), 200000))
        out.append(I("s_cbranch_scc1", lp))
        out.append(Ins("label", ld))
        out.append(I("s_mul_i32", s(sO2), s(sTT), 14 * 256))
        out.append(I("s_add_u32", s(sO2), s(sO2), hex(WS_ST)))
        out.append(I("v_lshlrev_b32", v(vA), 2, v(vL)))
        for j in range(14):
            out.append(I("buffer_load_dword", v(XF + j), v(vA), s(SWS, 4), s(sO2), mods=f"offen offset:{256 * j} sc1"))
        TB = 0
        out.append(I("s_mul_i32", s(sT0), s(sW), 4608))
        out.append(I("v_and_b32", v(vT[0]), 31, v(vL)))
        out.append(I("v_lshrrev_b32", v(vT[1]), 5, v(vL)))
        out.append(I("v_mul_u32_u24", v(vT[0]), 72, v(vT[0])))
        out.append(I("v_lshl_add_u32", v(vT[0]), v(vT[1]), 3, v(vT[0])))
        out.append(I("v_add_u32", v(vT[0]), s(sT0), v(vT[0])))
        out.append(I("v_bfe_u32", v(vT[2]), v(vL), 2, 2))
        out.append(I("v_lshl_add_u32", v(vT[2]), v(vT[1]), 3, v(vT[2])))
        out.append(I("v_mul_u32_u24", v(vT[2]), 72, v(vT[2])))
        out.append(I("v_bfe_u32", v(vT[3]), v(vL), 4, 1))
        out.append(I("v_lshl_add_u32", v(vT[2]), v(vT[3]), 5, v(vT[2])))
        out.append(I("v_and_b32", v(vT[3]), 3, v(vL)))
        out.append(I("v_lshl_add_u32", v(vT[2]), v(vT[3]), 3, v(vT[2])))
        out.append(I("v_add_u32", v(vT[2]), s(sT0), v(vT[2])))
        out.append(I("s_lshl_b32", s(sO0), s(sFT), 7))
        out.append(I("s_lshl_b32", s(sO1), s(sTT), 1))
        out.append(I("s_add_u32", s(sO0), s(sO0), s(sO1)))
        out.append(I("s_lshl_b32", s(sO0), s(sO0), 10))
        out.append(I("s_add_u32", s(sO0), s(sO0), hex(WS_Z2F)))
        out.append(I("s_add_u32", s(sO1), s(sO0), 2 * 128 * 1024))
        for j in range(1, 14):
            out.append(I("v_add_f32", v(XF), v(XF), v(XF + j)))
        out.append(I("v_mov_b32", v(vS2), v(XF)))
        out.append(I("v_mov_b32", v(vS1), v(XF)))
        out.append(I("v_permlane32_swap_b32", v(vS1), v(vS2)))
        out.append(I("v_mul_f32", v(vS1), f32(1.0 / FH), v(vS1)))
        out.append(I("v_mul_f32", v(vS2), f32(1.0 / FH), v(vS2)))
        out.append(I("v_fma_f32", v(vS2), "-" + v(vS1), v(vS1), v(vS2)))
        out.append(I("v_max_f32", v(vS2), 0, v(vS2)))
        out.append(I("v_add_f32", v(vS2), f32(1e-5), v(vS2)))
        out.append(I("v_rsq_f32", v(vR), v(vS2)))
        out.append(I("v_mul_f32", v(vNMR), v(vS1), v(vR)))
        out.append(I("v_sub_f32", v(vNMR), 0, v(vNMR)))
        for pr in range(2):
            for i in range(16):
                out.append(I("v_fma_f32", v(ACC[pr] + i), v(ACC[pr] + i), v(vR), v(vNMR)))
            out += cvt_stream(XF + 16 + 8 * pr, ACC[pr])
            for jj in range(4):
                out.append(I("ds_write_b64", v(vT[0]), v(XF + 16 + 8 * pr + 2 * jj, 2), mods=f"offset:{pr * 2304 + jj * 16}", tok_w=f"tw{pr}"))
        for pr in range(2):
            out.append(need(f"tw{pr}"))
            for m in range(2):
                for t in range(2):
                    out.append(I("ds_read_b64_tr_b16", v(XF + 32 + 8 * pr + 4 * m + 2 * t, 2), v(vT[2]),
                                 mods=f"offset:{pr * 2304 + (16 * m + 4 * t) * 72}"))
        for pr in range(2):
            for m in range(2):
                out.append(I("buffer_store_dwordx4", v(XF + 32 + 8 * pr + 4 * m, 4), v(vL16), s(SWS, 4), s([sO0, sO1][pr]),
                             mods=f"offen offset:{1024 * m}"))
        return out

    def qk_setup():
        out = []
        out.append(I("s_cmp_lt_u32", s(sSLOT), 4))
        out.append(I("s_cselect_b32", s(sScale), f32(QSCALE), "1.0"))
        out.append(I("s_cselect_b32", s(sQKb), hex(WS_QF), hex(WS_KF)))
        return out

    def head_off(base_s):
        out = []
        out.append(I("s_and_b32", s(sO0), s(sSLOT), 3))
        out.append(I("s_lshl_b32", s(sO0), s(sO0), 2))
        out.append(I("s_add_u32", s(sO0), s(sO0), s(sCT)))
        out.append(I("s_lshl_b32", s(sO0), s(sO0), 17))
        out.append(I("s_lshl_b32", s(sO1), s(sTT), 10))
        out.append(I("s_add_u32", s(sO0), s(sO0), s(sO1)))
        out.append(I("s_add_u32", s(sQKb), s(sO0), base_s))
        return out

    def qk_epi(pr):
        out = []
        a = ACC[2 + pr]
        for i in range(16):
            out.append(I("v_mul_f32", v(a + i), s(sScale), v(a + i)))
        out += cvt_stream(PK, a)
        for m in range(2):
            out.append(I("s_add_u32", s(sSo), s(sQKb), hex((pr * 4 + m) * 65536)))
            out.append(I("buffer_store_dwordx4", v(PK + 4 * m, 4), v(vL16), s(SWS, 4), s(sSo), mods="offen"))
        return out

    def v_setup():
        out = []
        out.append(I("v_bfe_u32", v(vA), v(vL), 4, 1))
        out.append(I("v_lshlrev_b32", v(vA), 16, v(vA)))
        out.append(I("v_lshrrev_b32", v(vB), 5, v(vL)))
        out.append(I("v_lshl_add_u32", v(vA), v(vB), 8, v(vA)))
        out.append(I("v_and_b32", v(vB), 15, v(vL)))
        out.append(I("v_lshl_add_u32", v(vR), v(vB), 4, v(vA)))
        return out

    def v_epi(pr):
        out = []
        a = ACC[2 + pr]
        out += cvt_stream(PK, a)
        out.append(I("s_add_u32", s(sSo), s(sQKb), hex(pr * 4 * 65536)))
        for m in range(2):
            out.append(I("buffer_store_dwordx4", v(PK + 4 * m, 4), v(vR), s(SWS, 4), s(sSo), mods=f"offen offset:{512 * m}"))
        return out

    def group1(ztype, qtype):
        aWc = aW.clone()
        RA1 = 4
        main = []
        marks = {}
        for q in range(-RA1, 64):
            qr = q + RA1
            if qr < 64:
                st = 8 + qr // 16
                if qr % 16 == 0:
                    pre = []
                    if ztype == "z2" and st == 10:
                        pre.append(need("stat"))
                    marks[st] = len(main)
                    main += pre + [need(f"st{st}"), I("s_barrier")]
                    if ztype == "z2" and st == 10:
                        main += flag_store()
                base = (st % 5) * SLOT
                main += wread(WF + (qr % 6) * 4, base + (qr % 16) * 2048, aWc)
            if q >= 0:
                pr, kap = divmod(q, 32)
                a = ACC[2 + pr]
                c = "0" if kap == 0 else a
                if qtype == "v":
                    main.append(MFMA(a, XF + 4 * kap, WF + (q % 6) * 4, c))
                else:
                    main.append(MFMA(a, WF + (q % 6) * 4, XF + 4 * kap, c))
                if q == 31:
                    marks["p2end"] = len(main)
        setup = (qk_setup() + head_off(s(sQKb))) if qtype == "qk" else (v_setup() + head_off(hex(WS_VF)))
        epi = qk_epi if qtype == "qk" else v_epi
        side1 = z2_part1() if ztype == "z2" else z1_epi()
        a0 = marks["p2end"] + 10
        main = weave(main, epi(0), a0, len(main) - 4)
        main = weave(main, side1, 12, marks[10])
        p.add(setup)
        p.add(main)
        p.add(epi(1))
        p.add(T.ts(4))
        if ztype == "z2":
            p("s_barrier")
            p.add(z2_part2())
        p.add(T.ts(5) + T.ts(6, True) + T.flush(SWS, sW, vA, vB, sT0))
        p("s_endpgm")

    p.label("K1_CLS_A")
    group1("z2", "qk")
    p.label("K1_CLS_C")
    group1("z1", "qk")
    p.label("K1_CLS_D")
    group1("z1", "v")
    p.label("K1_CLS_E")
    p.add(z1_epi())
    p.add(T.ts(4) + T.ts(5) + T.ts(6, True) + T.flush(SWS, sW, vA, vB, sT0))
    p("s_cmp_lg_u32", s(sSLOT), 12)
    p("s_cbranch_scc1", "K1_END")
    p("s_cmp_lg_u32", s(sCT), 0)
    p("s_cbranch_scc1", "K1_END")
    p("v_lshrrev_b32", v(vA), 5, v(vL))
    p("v_lshlrev_b32", v(vA), 4, v(vA))
    GA = ACC[0]
    for b in range(4):
        for j in range(8):
            p("buffer_load_dwordx4", v(ACC[2] + 4 * j, 4), v(vA), s(SGW, 4), "0", mods=f"offen offset:{32 * (8 * b + j)}")
        for j in range(8):
            kap = 8 * b + j
            p.add(MFMA(GA, ACC[2] + 4 * j, XF + 4 * kap, "0" if kap == 0 else GA))
    p("v_mul_f32", v(vA), f32(-LOG2E), v(GA))
    p("v_exp_f32", v(vA), v(vA))
    p("v_add_f32", v(vA), "1.0", v(vA))
    p("v_rcp_f32", v(vA), v(vA))
    p("v_and_b32", v(vB), 31, v(vL))
    p("v_lshlrev_b32", v(vB), 2, v(vB))
    p("s_lshl_b32", s(sO0), s(sTT), 7)
    p("s_add_u32", s(sO0), s(sO0), hex(WS_G))
    p("buffer_store_dword", v(vA), v(vB), s(SWS, 4), s(sO0), mods="offen")
    p.label("K1_END")
    p("s_endpgm")
    return kernel_text(name, p.finish())
```

```python
import sys, json
sys.path.insert(0, "gen")
from common import *
import importlib, os
fk = importlib.import_module(os.environ.get("GEN", "fk4"))
NAME = "gated_mix__mha_block__mixer_gmlp__prompt"
ref = open(f"cdna_kernels/{NAME}.s.ref").read()
head = ref[:ref.index("; @launch")]
head += f"; @launch grid=({fk.FK_WGS},1,1) block=(512,1,1) lds={fk.FK_LDS}\n"
head += '.amdgcn_target "amdgcn-amd-amdhsa--gfx950"\n'
txt, names = fk.fk(NAME + "_kernel")
if names:
    head += "; STAMPS " + json.dumps(names) + "\n"
txt = head + txt
out = sys.argv[1] if len(sys.argv) > 1 else f"fk.s"
open(out, "w").write(txt)
print("wrote", out, len(txt))
```
